```python
import torch

def _softmax(x, axis=-1):
    return torch.softmax(x, dim=axis)
def _gelu(x):
    return torch.nn.functional.gelu(x, approximate="tanh")
def _silu(x):
    return torch.nn.functional.silu(x)
def _sigmoid(x):
    return torch.sigmoid(x)
def _layernorm(x, axis=-1, eps=1e-5):
    m = x.mean(dim=axis, keepdim=True)
    v = x.var(dim=axis, keepdim=True, unbiased=False)
    return (x - m) / torch.sqrt(v + eps)
def _scatter_add(tgt, idx, src, axis=0):
    return tgt.clone().index_add_(axis, idx, src)
def _segment_sum(src, seg, n):
    out = torch.zeros((n,) + src.shape[1:], dtype=src.dtype)
    return out.index_add_(0, seg, src)
def _pad(x, pw):
    flat = tuple(v for pair in reversed(pw) for v in pair)
    return torch.nn.functional.pad(x, flat)

kernel_name = 'standalone__self_sup_conv_stem_hubert__speech'

def setup_inputs():

    _w = (lambda a: (lambda t: t.to(torch.bfloat16) if t.is_floating_point() else t)(torch.as_tensor(a)))
    B, T, D, K = 2, 4000, 512, 15
    scale = (1.0 / (K * D)) ** 0.5
    return {
        "x": _w((lambda *s: torch.randn(*s, dtype=torch.bfloat16) * 0.05)(B, T, D)),
        "w": _w((lambda *s: torch.randn(*s, dtype=torch.bfloat16) * 0.05)(K, D, D) * scale),
        "b": _w((lambda *s: torch.randn(*s, dtype=torch.bfloat16) * 0.05)(D) * 0.1),
        "gamma": _w(torch.ones((D,), dtype=float)),
        "beta": _w(torch.zeros((D,), dtype=float)),
    }

def reference(x, w, b, gamma, beta):
    B, T, D = x.shape
    K = w.shape[0]
    s = 2
    L = (T - K) // s + 1
    y = torch.einsum('blc,cd->bld', x[:, 0 : s * L : s, :], w[0])
    for i in range(1, K):
        y = y + torch.einsum('blc,cd->bld', x[:, i : i + s * L : s, :], w[i])
    y = y + b[None, None, :]
    mu = y.mean(1, keepdims=True)
    var = ((y - mu) ** 2).mean(1, keepdims=True)
    yn = (y - mu) / torch.sqrt(var + 1e-5)
    yn = yn * gamma[None, None, :] + beta[None, None, :]
    return _gelu(yn)
```

```python
import sys

NAME = "standalone__self_sup_conv_stem_hubert__speech"
HEADER = """; Kernarg layout for this problem (64 bytes, ptrs only, base s[0:1]):
"""

ASLOT = [0, 17408]
BSLOT = [34816, 34816+32768, 34816+65536, 34816+65536+28672]
LDS_BYTES = BSLOT[3] + 28672
HT = 0x2f30ba77102c2

out = []
def e(s): out.append("    " + s)
def lab(s): out.append(s + ":")
def c(s): out.append("    ; " + s)

def nT(T): return 8 - (T >> 1)

VA = {(0,0):2, (0,1):3, (1,0):4, (1,1):5}
VB = [6,7,8,9]
ACC = 16
FS = [48, 108]
BS = [168, 200]
def acc(j): return f"v[{ACC+4*j}:{ACC+4*j+3}]"
def F(s,t): return f"v[{FS[s]+4*t}:{FS[s]+4*t+3}]"
def Bf(s,a): return f"v[{BS[s]+4*a}:{BS[s]+4*a+3}]"

def reads_for(T, s):
    p, hh = T >> 1, T & 1
    n = nT(T)
    rA = []
    for t in range(n + 7):
        phi, sh = t & 7, t >> 3
        rA.append(f"ds_read_b128 {F(s,t)}, v{VA[(sh,hh)]} offset:{ASLOT[p] + 17*phi*128}")
    rB = []
    for a in range(n):
        b0 = BS[s] + 4*a
        rB.append([f"ds_read_b64_tr_b16 v[{b0}:{b0+1}], v{VB[T]} offset:{a*4096}",
                   f"ds_read_b64_tr_b16 v[{b0+2}:{b0+3}], v{VB[T]} offset:{a*4096+512}"])
    seq = rB[0] + rA[:8]
    for a in range(1, n):
        seq += rB[a] + [rA[7+a]]
    return seq

def gen():
    out.append(HEADER.rstrip("\n"))
    out.append(f"; @launch grid=(256,1,1) block=(512,1,1) lds={LDS_BYTES}")
    out.append('.amdgcn_target "amdgcn-amd-amdhsa--gfx950"')
    out.append(".text")
    out.append(f".globl {NAME}_kernel")
    out.append(".p2align 8")
    out.append(f".type {NAME}_kernel,@function")
    lab(f"{NAME}_kernel")
    e("s_cmp_ge_u32 s2, 256")
    e("s_cbranch_scc1 L_end")
    e("s_load_dwordx4 s[4:7], s[0:1], 0")
    e("s_load_dwordx4 s[8:11], s[0:1], 16")
    e("s_load_dwordx4 s[12:15], s[0:1], 32")
    e("s_load_dwordx4 s[16:19], s[0:1], 48")
    c("decode workgroup: xcd = wg&7, idx = wg>>3; batch = xcd>>2; ntile = (xcd&3)*2 + (idx&1); mtile = idx>>1")
    e("s_and_b32 s24, s2, 7")
    e("s_lshr_b32 s25, s2, 3")
    e("s_lshr_b32 s20, s24, 2")
    e("s_and_b32 s21, s24, 3")
    e("s_lshl_b32 s21, s21, 1")
    e("s_and_b32 s26, s25, 1")
    e("s_add_u32 s21, s21, s26")
    e("s_lshr_b32 s22, s25, 1")
    e("v_lshrrev_b32 v1, 6, v0")
    e("v_and_b32 v0, 63, v0")
    e("s_nop 0")
    e("v_readfirstlane_b32 s23, v1")
    e("s_mov_b32 s26, 0x%x" % (HT & 0xffffffff))
    e("s_mov_b32 s27, 0x%x" % (HT >> 32))
    e("s_waitcnt lgkmcnt(0)")
    c("SRDs")
    e("s_mov_b32 s28, s4")
    e("s_and_b32 s29, s5, 0xffff")
    e("s_mov_b32 s30, 8192000")
    e("s_mov_b32 s31, 0x00020000")
    e("s_mov_b32 s32, s6")
    e("s_and_b32 s33, s7, 0xffff")
    e("s_mov_b32 s34, 7864320")
    e("s_mov_b32 s35, 0x00020000")
    e("s_cmp_ge_u32 s23, 4")
    e("s_cbranch_scc1 L_producer")

    c("=== consumer ===")
    c("v0 = lane; tau = lane&15 (v10), kq = lane>>4 (v11)")
    e("v_and_b32 v10, 15, v0")
    e("v_lshrrev_b32 v11, 4, v0")
    c("param loads: channel = n0 + 16*w + 4*kq -> byte off")
    e("s_lshl_b32 s48, s21, 7")
    e("s_lshl_b32 s49, s23, 5")
    e("s_add_u32 s48, s48, s49")
    e("v_lshlrev_b32 v12, 3, v11")
    e("v_add_u32 v12, s48, v12")
    e("global_load_dwordx2 v[232:233], v12, s[8:9]")
    e("global_load_dwordx2 v[234:235], v12, s[10:11]")
    e("global_load_dwordx2 v[236:237], v12, s[12:13]")
    c("A (x) read addresses")
    for sh in range(2):
        e(f"v_add_u32 v13, {sh}, v10")
        e("v_mul_u32_u24 v14, 3, v13")
        e("v_lshrrev_b64 v[14:15], v14, s[26:27]")
        e("v_and_b32 v14, 7, v14")
        e("v_xor_b32 v14, v14, v11")
        e("v_lshlrev_b32 v13, 7, v13")
        e("v_lshl_add_u32 v%d, v14, 4, v13" % VA[(sh,0)])
        e("v_xor_b32 v14, 4, v14")
        e("v_lshl_add_u32 v%d, v14, 4, v13" % VA[(sh,1)])
    c("B (w) read addresses: r=(lane&15)>>2, c4=lane&3, f=((r>>1)&1)|((kq&1)<<1)")
    e("v_lshrrev_b32 v13, 2, v10")
    e("v_and_b32 v14, 3, v0")
    e("v_lshrrev_b32 v15, 1, v13")
    e("v_and_b32 v1, 1, v11")
    e("v_lshl_or_b32 v15, v1, 1, v15")
    e("v_xor_b32 v15, s23, v15")
    e("v_lshl_add_u32 v13, v11, 3, v13")
    e("v_lshlrev_b32 v13, 7, v13")
    e("v_lshl_add_u32 v13, v15, 5, v13")
    e("v_lshl_add_u32 v13, v14, 3, v13")
    for T in range(4):
        e(f"v_add_u32 v{VB[T]}, {BSLOT[T]}, v13")
    c("init acc with bias")
    e("s_waitcnt vmcnt(2)")
    e("v_lshlrev_b32 v13, 16, v232")
    e("v_and_b32 v14, 0xffff0000, v232")
    e("v_lshlrev_b32 v15, 16, v233")
    e("v_and_b32 v1, 0xffff0000, v233")
    for j in range(8):
        e(f"v_mov_b32 v{ACC+4*j}, v13")
        e(f"v_mov_b32 v{ACC+4*j+1}, v14")
        e(f"v_mov_b32 v{ACC+4*j+2}, v15")
        e(f"v_mov_b32 v{ACC+4*j+3}, v1")
    e("s_barrier")
    for r in reads_for(0, 0): e(r)
    e("s_mov_b32 s50, 0")
    e("s_waitcnt lgkmcnt(0)")
    e("s_barrier")
    lab("L_cloop")
    for T in range(4):
        s = T & 1
        Tn = (T + 1) & 3
        rd = reads_for(Tn, s ^ 1)
        pos = {}
        for k, r in enumerate(rd):
            pos.setdefault((k * 3) // 2, []).append(r)
        m = 0
        c(f"phase type {T}")
        for a in range(nT(T)):
            for j in range(8):
                e(f"v_mfma_f32_16x16x32_bf16 {acc(j)}, {Bf(s,a)}, {F(s,j+a)}, {acc(j)}")
                for r in pos.get(m, []): e(r)
                m += 1
        if T == 3:
            e("s_add_u32 s50, s50, 1")
            e("s_cmp_lt_u32 s50, 8")
        e("s_waitcnt lgkmcnt(0)")
        e("s_barrier")
    e("s_cbranch_scc1 L_cloop")

    c("=== epilogue ===")
    A = lambda j,i: f"v{ACC+4*j+i}"
    S = [48,49,50,51]; M = [52,53,54,55]; Q = [56,57,58,59]; TMP = [60,61,62,63]; PUB=[64,65,66,67]
    e("s_nop 15")
    e("s_lshl_b32 s51, s22, 7")
    e("s_sub_u32 s52, 1993, s51")
    e("v_lshlrev_b32 v13, 3, v10")
    e("v_sub_u32 v13, s52, v13")
    for j in range(8):
        e(f"v_cmp_lt_i32 s[{60+2*j}:{61+2*j}], {j}, v13")
    e("s_mov_b32 s53, 0x3c000000")
    e("s_cmp_eq_u32 s22, 15")
    e("s_cbranch_scc0 L_nomask1")
    e("s_mov_b32 s53, 0x3c607038")
    for j in range(8):
        for i in range(4):
            e(f"v_cndmask_b32 {A(j,i)}, 0, {A(j,i)}, s[{60+2*j}:{61+2*j}]")
    lab("L_nomask1")
    for i in range(4): e(f"v_add_f32 v{S[i]}, {A(0,i)}, {A(1,i)}")
    for i in range(4): e(f"v_add_f32 v{TMP[i]}, {A(2,i)}, {A(3,i)}")
    for i in range(4): e(f"v_add_f32 v{M[i]}, {A(4,i)}, {A(5,i)}")
    for i in range(4): e(f"v_add_f32 v{Q[i]}, {A(6,i)}, {A(7,i)}")
    for i in range(4): e(f"v_add_f32 v{S[i]}, v{S[i]}, v{TMP[i]}")
    for i in range(4): e(f"v_add_f32 v{M[i]}, v{M[i]}, v{Q[i]}")
    for i in range(4): e(f"v_add_f32 v{S[i]}, v{S[i]}, v{M[i]}")
    def allred(R):
        for sh in (8,4,2,1):
            for i in range(4):
                e(f"v_add_f32_dpp v{R[i]}, v{R[i]}, v{R[i]} row_ror:{sh} row_mask:0xf bank_mask:0xf")
    allred(S)
    for i in range(4): e(f"v_mul_f32 v{M[i]}, s53, v{S[i]}")
    e("s_cmp_eq_u32 s22, 15")
    e("s_cbranch_scc0 L_nomask2")
    for j in range(8):
        for i in range(4):
            e(f"v_cndmask_b32 {A(j,i)}, v{M[i]}, {A(j,i)}, s[{60+2*j}:{61+2*j}]")
    lab("L_nomask2")
    for j in range(8):
        for i in range(4): e(f"v_sub_f32 v{TMP[i]}, {A(j,i)}, v{M[i]}")
        for i in range(4):
            if j == 0: e(f"v_mul_f32 v{Q[i]}, v{TMP[i]}, v{TMP[i]}")
            else: e(f"v_fmac_f32 v{Q[i]}, v{TMP[i]}, v{TMP[i]}")
    allred(Q)
    c("publish partials")
    e("s_mov_b32 s40, s18")
    e("s_and_b32 s41, s19, 0xffff")
    e("s_mov_b32 s42, 131072")
    e("s_mov_b32 s43, 0x00020000")
    e("v_cmp_eq_u32 s[54:55], 1, v10")
    e("s_lshl_b32 s56, s20, 3")
    e("s_add_u32 s56, s56, s21")
    e("s_lshl_b32 s57, s56, 2")
    e("s_add_u32 s57, s57, s23")
    e("s_lshl_b32 s57, s57, 11")
    e("s_lshl_b32 s58, s22, 7")
    e("s_add_u32 s58, s58, s57")
    for i in range(4): e(f"v_cndmask_b32 v{PUB[i]}, v{S[i]}, v{Q[i]}, s[54:55]")
    e("v_lshlrev_b32 v13, 5, v11")
    e("v_lshl_add_u32 v14, v10, 4, v13")
    e("s_mov_b64 s[54:55], exec")
    e("s_mov_b32 exec_lo, 0x00030003")
    e("s_mov_b32 exec_hi, 0x00030003")
    e(f"buffer_store_dwordx4 v[{PUB[0]}:{PUB[3]}], v14, s[40:43], s58 offen sc1")
    e("s_mov_b64 exec, s[54:55]")
    e("s_waitcnt vmcnt(0)")
    e("s_barrier")
    e("s_cmp_eq_u32 s23, 0")
    e("s_cbranch_scc0 L_nopoll")
    e("s_lshl_b32 s59, s56, 2")
    e("v_mov_b32 v14, s59")
    e("v_mov_b32 v15, 1")
    e("s_mov_b64 exec, 1")
    e("global_atomic_add v14, v15, s[16:17] sc1")
    e("s_mov_b32 s76, 0x10000")
    lab("L_poll")
    e("global_load_dword v15, v14, s[16:17] sc1")
    e("s_waitcnt vmcnt(0)")
    e("v_readfirstlane_b32 s77, v15")
    e("s_cmp_ge_u32 s77, 16")
    e("s_cbranch_scc1 L_polldone")
    e("s_sub_u32 s76, s76, 1")
    e("s_cbranch_scc1 L_polldone")
    e("s_sleep 1")
    e("s_branch L_poll")
    lab("L_polldone")
    e("s_mov_b64 exec, -1")
    lab("L_nopoll")
    e("s_barrier")
    c("gather partials: lane (mt = lane&15, q)")
    e("v_lshl_add_u32 v14, v10, 7, v13")
    e("buffer_load_dwordx4 v[68:71], v14, s[40:43], s57 offen sc1")
    e("buffer_load_dwordx4 v[72:75], v14, s[40:43], s57 offen offset:16 sc1")
    e("v_cmp_eq_u32 s[54:55], 15, v10")
    e("v_mov_b32 v76, 0x43000000")
    e("v_mov_b32 v77, 0x42920000")
    e("v_mov_b32 v78, 0x3c000000")
    e("v_mov_b32 v79, 0x3c607038")
    e("v_cndmask_b32 v76, v76, v77, s[54:55]")
    e("v_cndmask_b32 v78, v78, v79, s[54:55]")
    c("out SRD (per batch)")
    e("s_mul_i32 s44, s20, 2040832")
    e("s_add_u32 s36, s14, s44")
    e("s_addc_u32 s37, s15, 0")
    e("s_and_b32 s37, s37, 0xffff")
    e("s_mov_b32 s38, 2040832")
    e("s_mov_b32 s39, 0x00020000")
    e("s_mov_b32 s45, 0x3a038846")
    e("s_mov_b32 s46, 0x3727c5ac")
    e("s_waitcnt vmcnt(0)")
    PS = [68,69,70,71]; PM = [72,73,74,75]
    for i in range(4): e(f"v_mov_b32 v{S[i]}, v{PS[i]}")
    allred(S)
    for i in range(4): e(f"v_mul_f32 v{M[i]}, s45, v{S[i]}")
    for i in range(4): e(f"v_fma_f32 v{TMP[i]}, v{PS[i]}, v78, -v{M[i]}")
    for i in range(4): e(f"v_mul_f32 v{TMP[i]}, v{TMP[i]}, v{TMP[i]}")
    for i in range(4): e(f"v_fma_f32 v{Q[i]}, v{TMP[i]}, v76, v{PM[i]}")
    allred(Q)
    e("v_mov_b32 v13, s46")
    for i in range(4): e(f"v_fma_f32 v{Q[i]}, v{Q[i]}, s45, v13")
    for i in range(4): e(f"v_rsq_f32 v{Q[i]}, v{Q[i]}")
    c("gamma/beta to fp32")
    e("v_lshlrev_b32 v60, 16, v234")
    e("v_and_b32 v61, 0xffff0000, v234")
    e("v_lshlrev_b32 v62, 16, v235")
    e("v_and_b32 v63, 0xffff0000, v235")
    e("v_lshlrev_b32 v64, 16, v236")
    e("v_and_b32 v65, 0xffff0000, v236")
    e("v_lshlrev_b32 v66, 16, v237")
    e("v_and_b32 v67, 0xffff0000, v237")
    for i in range(4): e(f"v_mul_f32 v{Q[i]}, v{Q[i]}, v{60+i}")
    for i in range(4): e(f"v_fma_f32 v{M[i]}, -v{M[i]}, v{Q[i]}, v{64+i}")
    c("store offset")
    e("v_lshlrev_b32 v13, 3, v10")
    e("v_add_u32 v13, s51, v13")
    e("v_lshlrev_b32 v13, 10, v13")
    e("v_add_u32 v13, v13, v12")
    e("s_mov_b32 s47, 4096")
    import struct, math
    def f2u(x): return struct.unpack("<I", struct.pack("<f", x))[0]
    k = -2.0 * math.sqrt(2.0/math.pi) * math.log2(math.e)
    e("s_mov_b32 s78, 0x%08x" % f2u(k * 0.044715))
    e("v_mov_b32 v15, 0x%08x" % f2u(k))
    for j in range(8):
        Z = [80+i for i in range(4)]; P = [84+i for i in range(4)]
        for i in range(4): e(f"v_fma_f32 v{Z[i]}, {A(j,i)}, v{Q[i]}, v{M[i]}")
        for i in range(4): e(f"v_mul_f32 v{P[i]}, v{Z[i]}, v{Z[i]}")
        for i in range(4): e(f"v_fma_f32 v{P[i]}, v{P[i]}, s78, v15")
        for i in range(4): e(f"v_mul_f32 v{P[i]}, v{P[i]}, v{Z[i]}")
        for i in range(4): e(f"v_exp_f32 v{P[i]}, v{P[i]}")
        for i in range(4): e(f"v_add_f32 v{P[i]}, 1.0, v{P[i]}")
        for i in range(4): e(f"v_rcp_f32 v{P[i]}, v{P[i]}")
        for i in range(4): e(f"v_mul_f32 v{Z[i]}, v{Z[i]}, v{P[i]}")
        o = 88 + 2*j
        e(f"v_cvt_pk_bf16_f32 v{o}, v{Z[0]}, v{Z[1]}")
        e(f"v_cvt_pk_bf16_f32 v{o+1}, v{Z[2]}, v{Z[3]}")
        if j < 4:
            e(f"buffer_store_dwordx2 v[{o}:{o+1}], v13, s[36:39], 0 offen offset:{j*1024}")
        else:
            e(f"buffer_store_dwordx2 v[{o}:{o+1}], v13, s[36:39], s47 offen offset:{(j-4)*1024}")
    e("s_endpgm")

    lab("L_producer")
    c("=== producer === pw = wave-4 (s24); g = lane>>3 (v10); pos = lane&7 (v11)")
    e("s_sub_u32 s24, s23, 4")
    e("v_lshrrev_b32 v10, 3, v0")
    e("v_and_b32 v11, 7, v0")
    c("B voffset: (8pw+g)*1024 + (pos ^ 2f)*16, f = ((g>>1)&1) | ((pw&1)<<1)")
    e("v_and_b32 v12, 2, v10")
    e("s_and_b32 s25, s24, 1")
    e("s_lshl_b32 s25, s25, 2")
    e("v_or_b32 v12, s25, v12")
    e("v_xor_b32 v12, v12, v11")
    e("s_lshl_b32 s25, s24, 3")
    e("v_add_u32 v13, s25, v10")
    e("v_lshlrev_b32 v13, 10, v13")
    e("v_lshl_add_u32 v2, v12, 4, v13")
    c("A voffsets")
    e("s_lshl_b32 s25, s24, 1")
    for i in range(5):
        e(f"v_add_u32 v12, {8*i}, v10")
        e("v_cmp_le_u32 vcc, 17, v12")
        e("v_subrev_u32 v13, 17, v12")
        e("v_mov_b32 v14, s25")
        e("v_cndmask_b32 v12, v12, v13, vcc")
        e("v_addc_co_u32 v14, vcc, 0, v14, vcc")
        e("v_mul_u32_u24 v16, 3, v12")
        e("v_lshrrev_b64 v[16:17], v16, s[26:27]")
        e("v_and_b32 v16, 7, v16")
        e("v_xor_b32 v16, v16, v11")
        e("v_lshl_add_u32 v12, v12, 3, v14")
        e("v_lshlrev_b32 v12, 11, v12")
        e(f"v_lshl_add_u32 v{3+i}, v16, 4, v12")
    c("scalar bases: s48 = A soffset (chunk), s49 = B soffset (chunk); s52 = pw*1024, s53 = pw*4352")
    e("s_mul_i32 s48, s20, 4000")
    e("s_lshl_b32 s50, s22, 8")
    e("s_add_u32 s48, s48, s50")
    e("s_lshl_b32 s48, s48, 10")
    e("s_lshl_b32 s49, s21, 7")
    e("s_lshl_b32 s52, s24, 10")
    e("s_mul_i32 s53, s24, 4352")
    def issueA(p):
        e(f"s_add_u32 s54, s48, {p*1024}")
        for i in range(5):
            e(f"s_add_u32 m0, s53, {ASLOT[p] + i*1024}")
            if i == 4:
                e("s_mov_b64 exec, 0xffff")
            else:
                e("s_nop 0")
            e(f"buffer_load_dwordx4 v{3+i}, s[28:31], s54 offen lds")
        e("s_mov_b64 exec, -1")
    def issueB(T):
        p, hh = T >> 1, T & 1
        for a in range(nT(T)):
            e(f"s_add_u32 m0, s52, {BSLOT[T] + a*4096}")
            e(f"s_add_u32 s54, s49, {(2*a+p)*524288 + hh*32768}")
            e("buffer_load_dwordx4 v2, s[32:35], s54 offen lds")
    issueA(0); issueB(0); issueB(1); issueB(2); issueA(1); issueB(3)
    e("s_waitcnt vmcnt(27)")
    e("s_barrier")
    e("s_waitcnt vmcnt(19)")
    e("s_barrier")
    e("s_mov_b32 s50, 0")
    lab("L_ploop")
    e("s_add_u32 s48, s48, 128")
    e("s_add_u32 s49, s49, 65536")
    W = [15, 21, 15, 19]
    for T in range(4):
        if T & 1: issueA(T >> 1)
        issueB(T)
        if T == 3:
            e("s_add_u32 s50, s50, 1")
            e("s_cmp_lt_u32 s50, 7")
        e(f"s_waitcnt vmcnt({W[T]})")
        e("s_barrier")
    e("s_cbranch_scc1 L_ploop")
    e("s_waitcnt vmcnt(7)")
    e("s_barrier")
    e("s_waitcnt vmcnt(0)")
    e("s_barrier")
    lab("L_end")
    e("s_endpgm")
    out.append('.section .rodata,"a"')
    out.append(".p2align 6")
    out.append(f".amdhsa_kernel {NAME}_kernel")
    out.append("  .amdhsa_next_free_vgpr 240")
    out.append("  .amdhsa_next_free_sgpr 96")
    out.append("  .amdhsa_accum_offset 240")
    out.append("  .amdhsa_group_segment_fixed_size 0")
    out.append("  .amdhsa_kernarg_size 64")
    out.append("  .amdhsa_user_sgpr_count 2")
    out.append("  .amdhsa_user_sgpr_kernarg_segment_ptr 1")
    out.append("  .amdhsa_system_sgpr_workgroup_id_x 1")
    out.append("  .amdhsa_float_denorm_mode_32 3")
    out.append(".end_amdhsa_kernel")
    txt = "\n".join(out) + "\n"
    txt = txt.replace("0x3a038846", "0x%08x" % f2u(1.0/1993.0))
    assert f2u(1.0/73.0) == 0x3c607038, hex(f2u(1.0/73.0))
    assert f2u(1e-5) == 0x3727c5ac
    return txt

if __name__ == "__main__":
    t = gen()
    path = sys.argv[1] if len(sys.argv) > 1 else f"cdna_kernels/{NAME}.s"
    open(path, "w").write(t)
    print("wrote", path, len(t))
```

```python
import sys, struct, math

NAME = "standalone__self_sup_conv_stem_hubert__speech"
HEADER = """; Kernarg layout for this problem (64 bytes, ptrs only, base s[0:1]):
"""
OPT = set(a for a in sys.argv[1:] if a.startswith("-"))
STAMP = "-stamp" in OPT
NOPF = "-nopf" in OPT

ASLOT = [0, 17408]
BSLOT = [34816, 34816+32768, 34816+65536, 34816+65536+28672]
LDS_BYTES = BSLOT[3] + 28672
HT = 0x2f30ba77102c2

out = []
def e(s): out.append("    " + s)
def lab(s): out.append(s + ":")
def c(s): out.append("    ; " + s)
def stamp(k):
    if STAMP: e(f"s_memrealtime s[{80+2*k}:{81+2*k}]")
def f2u(x): return struct.unpack("<I", struct.pack("<f", x))[0]
def nT(T): return 8 - (T >> 1)

VA = {(0,0):2, (0,1):3, (1,0):4, (1,1):5}
VB = [6,7,8,9]
ACC = 16
FS = [48, 108]
BS = [168, 200]
def acc(j): return f"v[{ACC+4*j}:{ACC+4*j+3}]"
def F(s,t): return f"v[{FS[s]+4*t}:{FS[s]+4*t+3}]"
def Bf(s,a): return f"v[{BS[s]+4*a}:{BS[s]+4*a+3}]"

def reads_for(T, s):
    p, hh = T >> 1, T & 1
    n = nT(T)
    rA = []
    for t in range(n + 7):
        phi, sh = t & 7, t >> 3
        rA.append(f"ds_read_b128 {F(s,t)}, v{VA[(sh,hh)]} offset:{ASLOT[p] + 17*phi*128}")
    rB = []
    for a in range(n):
        b0 = BS[s] + 4*a
        rB.append([f"ds_read_b64_tr_b16 v[{b0}:{b0+1}], v{VB[T]} offset:{a*4096}",
                   f"ds_read_b64_tr_b16 v[{b0+2}:{b0+3}], v{VB[T]} offset:{a*4096+512}"])
    seq = rB[0] + rA[:8]
    for a in range(1, n):
        seq += rB[a] + [rA[7+a]]
    return seq

def gen():
    out.append(HEADER.rstrip("\n"))
    out.append(f"; @launch grid=(256,1,1) block=(512,1,1) lds={LDS_BYTES}")
    out.append('.amdgcn_target "amdgcn-amd-amdhsa--gfx950"')
    out.append(".text")
    out.append(f".globl {NAME}_kernel")
    out.append(".p2align 8")
    out.append(f".type {NAME}_kernel,@function")
    lab(f"{NAME}_kernel")
    e("s_cmp_ge_u32 s2, 256")
    e("s_cbranch_scc1 L_end")
    e("s_load_dwordx4 s[4:7], s[0:1], 0")
    e("s_load_dwordx4 s[8:11], s[0:1], 16")
    e("s_load_dwordx4 s[12:15], s[0:1], 32")
    e("s_load_dwordx4 s[16:19], s[0:1], 48")
    c("decode workgroup: xcd = wg&7, idx = wg>>3; batch = xcd>>2; ntile = (xcd&3)*2 + (idx&1); mtile = idx>>1")
    e("s_and_b32 s24, s2, 7")
    e("s_lshr_b32 s25, s2, 3")
    e("s_lshr_b32 s20, s24, 2")
    e("s_and_b32 s21, s24, 3")
    e("s_lshl_b32 s21, s21, 1")
    e("s_and_b32 s26, s25, 1")
    e("s_add_u32 s21, s21, s26")
    e("s_lshr_b32 s22, s25, 1")
    e("v_lshrrev_b32 v1, 6, v0")
    e("v_and_b32 v0, 63, v0")
    e("s_nop 0")
    e("v_readfirstlane_b32 s23, v1")
    e("s_mov_b32 s26, 0x%x" % (HT & 0xffffffff))
    e("s_mov_b32 s27, 0x%x" % (HT >> 32))
    e("s_waitcnt lgkmcnt(0)")
    c("SRDs: x s[28:31], w s[32:35]")
    e("s_mov_b32 s28, s4")
    e("s_and_b32 s29, s5, 0xffff")
    e("s_mov_b32 s30, 8192000")
    e("s_mov_b32 s31, 0x00020000")
    e("s_mov_b32 s32, s6")
    e("s_and_b32 s33, s7, 0xffff")
    e("s_mov_b32 s34, 7864320")
    e("s_mov_b32 s35, 0x00020000")
    e("s_cmp_ge_u32 s23, 4")
    e("s_cbranch_scc1 L_producer")

    c("=== consumer ===")
    stamp(0)
    c("v0 = lane; tau = lane&15 (v10), kq = lane>>4 (v11)")
    e("v_and_b32 v10, 15, v0")
    e("v_lshrrev_b32 v11, 4, v0")
    c("ws SRD s[40:43]; group s56; own slot offset s58; group base s57")
    e("s_mov_b32 s40, s18")
    e("s_and_b32 s41, s19, 0xffff")
    e("s_mov_b32 s42, 131072")
    e("s_mov_b32 s43, 0x00020000")
    e("s_lshl_b32 s56, s20, 3")
    e("s_add_u32 s56, s56, s21")
    e("s_lshl_b32 s57, s56, 13")
    e("s_lshl_b32 s59, s23, 7")
    e("s_add_u32 s57, s57, s59")
    e("s_lshl_b32 s58, s22, 9")
    e("s_add_u32 s58, s58, s57")
    c("clear own slot with the marker (lanes tau<2)")
    e("v_lshlrev_b32 v13, 5, v11")
    e("v_lshl_add_u32 v240, v10, 4, v13")
    e("v_lshl_add_u32 v241, v10, 9, v13")
    for i in range(4): e(f"v_mov_b32 v{64+i}, -1")
    e("s_mov_b32 exec_lo, 0x00030003")
    e("s_mov_b32 exec_hi, 0x00030003")
    e("buffer_store_dwordx4 v[64:67], v240, s[40:43], s58 offen sc1")
    e("s_mov_b64 exec, -1")
    c("param loads: channel = n0 + 16*w + 4*kq -> byte off")
    e("s_lshl_b32 s48, s21, 7")
    e("s_lshl_b32 s49, s23, 5")
    e("s_add_u32 s48, s48, s49")
    e("v_lshlrev_b32 v12, 3, v11")
    e("v_add_u32 v12, s48, v12")
    e("global_load_dwordx2 v[232:233], v12, s[8:9]")
    e("global_load_dwordx2 v[234:235], v12, s[10:11]")
    e("global_load_dwordx2 v[236:237], v12, s[12:13]")
    npf = 0
    PFD = 2
    for o in OPT:
        if o.startswith("-pfd"): PFD = int(o[4:])
    if not NOPF and "-pflin" in OPT:
        c("linear prefetch offsets: L = wg*32 + w*8 + lane (lane<8)")
        e("s_lshl_b32 s50, s2, 5")
        e("s_lshl_b32 s51, s23, 3")
        e("s_add_u32 s50, s50, s51")
        e("v_add_u32 v13, s50, v0")
        e("v_cmp_gt_u32 vcc, 8, v0")
        e("v_lshrrev_b32 v14, 9, v13")
        e("v_lshlrev_b32 v14, 19, v14")
        e("v_and_b32 v15, 511, v13")
        e("v_lshl_add_u32 v14, v15, 7, v14")
        e("v_lshlrev_b32 v15, 10, v13")
        e("v_mov_b32 v1, 0x7fffff00")
        e("v_cndmask_b32 v242, v1, v14, vcc")
        e("v_cndmask_b32 v243, v1, v15, vcc")
    elif not NOPF:
        c("XCD-local L2 prefetch offsets: u = (wg>>3)*4 + w")
        e("s_lshr_b32 s50, s2, 3")
        e("s_lshl_b32 s50, s50, 2")
        e("s_add_u32 s50, s50, s23")
        e("v_mov_b32 v1, 0x7fffff00")
        c("x: row = u*32 + lane (lane<32, row<4000)")
        e("s_lshl_b32 s51, s50, 5")
        e("v_add_u32 v13, s51, v0")
        e("v_cmp_gt_u32 vcc, 4000, v13")
        e("v_cmp_gt_u32 s[60:61], 32, v0")
        e("s_mul_i32 s51, s20, 4000")
        e("v_add_u32 v13, s51, v13")
        e("v_lshlrev_b32 v13, 10, v13")
        e("s_and_b64 vcc, vcc, s[60:61]")
        e("s_nop 1")
        e("v_cndmask_b32 v243, v1, v13, vcc")
        c("w: L = u*16 + lane (lane<16): tap = L>>7, row = (L>>1)&63, half = L&1")
        e("s_lshl_b32 s51, s50, 4")
        e("v_add_u32 v13, s51, v0")
        e("v_cmp_gt_u32 vcc, 16, v0")
        e("v_lshrrev_b32 v14, 7, v13")
        e("v_lshlrev_b32 v14, 19, v14")
        e("v_bfe_u32 v15, v13, 1, 6")
        e("v_lshl_add_u32 v14, v15, 10, v14")
        e("v_and_b32 v15, 1, v13")
        e("v_lshl_add_u32 v14, v15, 7, v14")
        e("s_and_b32 s51, s21, 6")
        e("s_lshl_b32 s51, s51, 7")
        e("v_add_u32 v14, s51, v14")
        e("v_cndmask_b32 v242, v1, v14, vcc")
    if not NOPF:
        e("s_mov_b32 s78, 0")
        e("s_mov_b32 s79, 0")
        for d in range(PFD - 1):
            e("s_add_u32 s78, s78, 65536")
            e("s_add_u32 s79, s79, 128")
            e("buffer_load_dword v238, v242, s[32:35], s78 offen")
            e("buffer_load_dword v239, v243, s[28:31], s79 offen")
            npf += 2
    c("A (x) read addresses")
    for sh in range(2):
        e(f"v_add_u32 v13, {sh}, v10")
        e("v_mul_u32_u24 v14, 3, v13")
        e("v_lshrrev_b64 v[14:15], v14, s[26:27]")
        e("v_and_b32 v14, 7, v14")
        e("v_xor_b32 v14, v14, v11")
        e("v_lshlrev_b32 v13, 7, v13")
        e("v_lshl_add_u32 v%d, v14, 4, v13" % VA[(sh,0)])
        e("v_xor_b32 v14, 4, v14")
        e("v_lshl_add_u32 v%d, v14, 4, v13" % VA[(sh,1)])
    c("B (w) read addresses")
    e("v_lshrrev_b32 v13, 2, v10")
    e("v_and_b32 v14, 3, v0")
    e("v_lshrrev_b32 v15, 1, v13")
    e("v_and_b32 v1, 1, v11")
    e("v_lshl_or_b32 v15, v1, 1, v15")
    e("v_xor_b32 v15, s23, v15")
    e("v_lshl_add_u32 v13, v11, 3, v13")
    e("v_lshlrev_b32 v13, 7, v13")
    e("v_lshl_add_u32 v13, v15, 5, v13")
    e("v_lshl_add_u32 v13, v14, 3, v13")
    for T in range(4):
        e(f"v_add_u32 v{VB[T]}, {BSLOT[T]}, v13")
    c("init acc with bias (this wait also covers the clear store)")
    e(f"s_waitcnt vmcnt({2+npf})")
    e("v_lshlrev_b32 v13, 16, v232")
    e("v_and_b32 v14, 0xffff0000, v232")
    e("v_lshlrev_b32 v15, 16, v233")
    e("v_and_b32 v1, 0xffff0000, v233")
    for j in range(8):
        e(f"v_mov_b32 v{ACC+4*j}, v13")
        e(f"v_mov_b32 v{ACC+4*j+1}, v14")
        e(f"v_mov_b32 v{ACC+4*j+2}, v15")
        e(f"v_mov_b32 v{ACC+4*j+3}, v1")
    e("s_lshl_b32 s59, s56, 2")
    e("v_mov_b32 v244, s59")
    e("s_barrier")
    stamp(1)
    for r in reads_for(0, 0): e(r)
    c("wave 0: signal 'cleared'")
    e("s_cmp_eq_u32 s23, 0")
    e("s_cbranch_scc0 L_nosig")
    e("v_mov_b32 v15, 1")
    e("s_mov_b64 exec, 1")
    e("global_atomic_add v244, v15, s[16:17] sc1")
    e("s_mov_b64 exec, -1")
    lab("L_nosig")
    e("s_mov_b32 s50, 0")
    e("s_waitcnt lgkmcnt(0)")
    e("s_barrier")
    stamp(2)
    if STAMP: e("s_memtime s[96:97]")
    lab("L_cloop")
    for T in range(4):
        s = T & 1
        Tn = (T + 1) & 3
        rd = reads_for(Tn, s ^ 1)
        pos = {}
        for k, r in enumerate(rd):
            pos.setdefault((k * 3) // 2, []).append(r)
        m = 0
        c(f"phase type {T}")
        order = [(a, j) for a in range(nT(T)) for j in range(8)]
        if "-jmajor" in OPT: order = [(a, j) for j in range(8) for a in range(nT(T))]
        for (a, j) in order:
            e(f"v_mfma_f32_16x16x32_bf16 {acc(j)}, {Bf(s,a)}, {F(s,j+a)}, {acc(j)}")
            for r in pos.get(m, []): e(r)
            if T == 0 and m == 50 and not NOPF:
                e(f"s_cmp_lt_u32 s50, {8-PFD}")
                e("s_cbranch_scc0 L_nopf")
                e("s_add_u32 s78, s78, 65536")
                e("s_add_u32 s79, s79, 128")
                e("buffer_load_dword v238, v242, s[32:35], s78 offen")
                e("buffer_load_dword v239, v243, s[28:31], s79 offen")
                lab("L_nopf")
            m += 1
        if T == 3:
            e("s_add_u32 s50, s50, 1")
            e("s_cmp_lt_u32 s50, 8")
        e("s_waitcnt lgkmcnt(0)")
        e("s_barrier")
    e("s_cbranch_scc1 L_cloop")

    c("=== epilogue ===")
    stamp(3)
    if STAMP: e("s_memtime s[98:99]")
    A = lambda j,i: f"v{ACC+4*j+i}"
    S = [48,49,50,51]; M = [52,53,54,55]; Q = [56,57,58,59]; TMP = [60,61,62,63]; PUB=[64,65,66,67]
    e("global_load_dword v245, v244, s[16:17] sc1")
    e("s_lshl_b32 s51, s22, 7")
    e("s_sub_u32 s52, 1993, s51")
    e("v_lshlrev_b32 v13, 3, v10")
    e("v_sub_u32 v13, s52, v13")
    for j in range(8):
        e(f"v_cmp_lt_i32 s[{60+2*j}:{61+2*j}], {j}, v13")
    e("v_cmp_eq_u32 s[54:55], 1, v10")
    e("s_mov_b32 s53, 0x%08x" % f2u(1.0/128))
    e("s_cmp_eq_u32 s22, 15")
    e("s_cbranch_scc0 L_nomask1")
    e("s_mov_b32 s53, 0x%08x" % f2u(1.0/73))
    for j in range(8):
        for i in range(4):
            e(f"v_cndmask_b32 {A(j,i)}, 0, {A(j,i)}, s[{60+2*j}:{61+2*j}]")
    lab("L_nomask1")
    def pk(op, d, a, b, cc=None):
        if cc is None: e(f"v_pk_{op}_f32 v[{d}:{d+1}], v[{a}:{a+1}], v[{b}:{b+1}]")
        else: e(f"v_pk_{op}_f32 v[{d}:{d+1}], v[{a}:{a+1}], v[{b}:{b+1}], v[{cc}:{cc+1}]")
    AR = lambda j,i: ACC+4*j+i
    for h in (0,2): pk("add", S[h], AR(0,h), AR(1,h))
    for h in (0,2): pk("add", TMP[h], AR(2,h), AR(3,h))
    for h in (0,2): pk("add", M[h], AR(4,h), AR(5,h))
    for h in (0,2): pk("add", Q[h], AR(6,h), AR(7,h))
    for h in (0,2): pk("add", S[h], S[h], TMP[h])
    for h in (0,2): pk("add", M[h], M[h], Q[h])
    for h in (0,2): pk("add", S[h], S[h], M[h])
    e("s_nop 0")
    def allred(R):
        for sh in (8,4,2,1):
            for i in range(4):
                e(f"v_add_f32_dpp v{R[i]}, v{R[i]}, v{R[i]} row_ror:{sh} row_mask:0xf bank_mask:0xf")
    allred(S)
    for i in range(4): e(f"v_mul_f32 v{M[i]}, s53, v{S[i]}")
    e("s_cmp_eq_u32 s22, 15")
    e("s_cbranch_scc0 L_nomask2")
    for j in range(8):
        for i in range(4):
            e(f"v_cndmask_b32 {A(j,i)}, v{M[i]}, {A(j,i)}, s[{60+2*j}:{61+2*j}]")
    lab("L_nomask2")
    for j in range(8):
        for h in (0,2): e(f"v_pk_add_f32 v[{TMP[h]}:{TMP[h]+1}], v[{AR(j,h)}:{AR(j,h)+1}], v[{M[h]}:{M[h]+1}] neg_lo:[0,1] neg_hi:[0,1]")
        for h in (0,2):
            if j == 0: pk("mul", Q[h], TMP[h], TMP[h])
            else: pk("fma", Q[h], TMP[h], TMP[h], Q[h])
    e("s_nop 0")
    allred(Q)
    c("publish partials (never the marker pattern)")
    for i in range(4): e(f"v_cndmask_b32 v{PUB[i]}, v{S[i]}, v{Q[i]}, s[54:55]")
    for i in range(4): e(f"v_min_u32 v{PUB[i]}, -2, v{PUB[i]}")
    e("s_mov_b32 exec_lo, 0x00030003")
    e("s_mov_b32 exec_hi, 0x00030003")
    e(f"buffer_store_dwordx4 v[{PUB[0]}:{PUB[3]}], v240, s[40:43], s58 offen sc1")
    e("s_mov_b64 exec, -1")
    stamp(4)
    c("constants while waiting")
    e("v_cmp_eq_u32 s[54:55], 15, v10")
    e("v_mov_b32 v76, 0x43000000")
    e("v_mov_b32 v77, 0x42920000")
    e("v_mov_b32 v78, 0x%08x" % f2u(1.0/128))
    e("v_mov_b32 v79, 0x%08x" % f2u(1.0/73))
    e("v_cndmask_b32 v76, v76, v77, s[54:55]")
    e("v_cndmask_b32 v78, v78, v79, s[54:55]")
    e("s_mul_i32 s44, s20, 2040832")
    e("s_add_u32 s36, s14, s44")
    e("s_addc_u32 s37, s15, 0")
    e("s_and_b32 s37, s37, 0xffff")
    e("s_mov_b32 s38, 2040832")
    e("s_mov_b32 s39, 0x00020000")
    e("s_mov_b32 s45, 0x%08x" % f2u(1.0/1993))
    e("s_mov_b32 s46, 0x%08x" % f2u(1e-5))
    e("v_lshlrev_b32 v100, 16, v234")
    e("v_and_b32 v101, 0xffff0000, v234")
    e("v_lshlrev_b32 v102, 16, v235")
    e("v_and_b32 v103, 0xffff0000, v235")
    e("v_lshlrev_b32 v104, 16, v236")
    e("v_and_b32 v105, 0xffff0000, v236")
    e("v_lshlrev_b32 v106, 16, v237")
    e("v_and_b32 v107, 0xffff0000, v237")
    e("v_lshlrev_b32 v13, 3, v10")
    e("v_add_u32 v13, s51, v13")
    e("v_lshlrev_b32 v13, 10, v13")
    e("v_add_u32 v13, v13, v12")
    e("s_mov_b32 s47, 4096")
    k = -2.0 * math.sqrt(2.0/math.pi) * math.log2(math.e)
    e("v_mov_b32 v108, 0x%08x" % f2u(k * 0.044715))
    e("v_mov_b32 v109, 0x%08x" % f2u(k * 0.044715))
    e("v_mov_b32 v110, 0x%08x" % f2u(k))
    e("v_mov_b32 v111, 0x%08x" % f2u(k))
    e("v_mov_b32 v112, 1.0")
    e("v_mov_b32 v113, 1.0")
    e("v_mov_b32 v14, s46")
    e("s_mov_b32 s76, 0x10000")
    c("wait: all workgroups of the group have cleared their slots in this launch")
    e("s_waitcnt vmcnt(1)")
    lab("L_cpoll")
    e("v_readfirstlane_b32 s77, v245")
    e("s_cmp_ge_u32 s77, 16")
    e("s_cbranch_scc1 L_dstart")
    e("s_sub_u32 s76, s76, 1")
    e("s_cbranch_scc1 L_dstart")
    e("s_sleep 2")
    e("global_load_dword v245, v244, s[16:17] sc1")
    e("s_waitcnt vmcnt(0)")
    e("s_branch L_cpoll")
    lab("L_dstart")
    e("s_mov_b32 s76, 0x10000")
    lab("L_dpoll")
    e("buffer_load_dwordx4 v[68:71], v241, s[40:43], s57 offen sc1")
    e("buffer_load_dwordx4 v[72:75], v241, s[40:43], s57 offen offset:16 sc1")
    e("s_waitcnt vmcnt(0)")
    e("v_max3_u32 v15, v68, v69, v70")
    e("v_max3_u32 v1, v71, v72, v73")
    e("v_max3_u32 v15, v15, v74, v75")
    e("v_max_u32 v15, v15, v1")
    e("v_cmp_eq_u32 vcc, -1, v15")
    e("s_cbranch_vccz L_ddone")
    e("s_sub_u32 s76, s76, 1")
    e("s_cbranch_scc0 L_dpoll")
    lab("L_ddone")
    stamp(5)
    PS = [68,69,70,71]; PM = [72,73,74,75]
    for i in range(4): e(f"v_mov_b32 v{S[i]}, v{PS[i]}")
    allred(S)
    for i in range(4): e(f"v_mul_f32 v{M[i]}, s45, v{S[i]}")
    for i in range(4): e(f"v_fma_f32 v{TMP[i]}, v{PS[i]}, v78, -v{M[i]}")
    for i in range(4): e(f"v_mul_f32 v{TMP[i]}, v{TMP[i]}, v{TMP[i]}")
    for i in range(4): e(f"v_fma_f32 v{Q[i]}, v{TMP[i]}, v76, v{PM[i]}")
    allred(Q)
    for i in range(4): e(f"v_fma_f32 v{Q[i]}, v{Q[i]}, s45, v14")
    for i in range(4): e(f"v_rsq_f32 v{Q[i]}, v{Q[i]}")
    e("s_nop 0")
    for i in range(4): e(f"v_mul_f32 v{Q[i]}, v{Q[i]}, v{100+i}")
    for i in range(4): e(f"v_fma_f32 v{M[i]}, -v{M[i]}, v{Q[i]}, v{104+i}")
    stamp(6)
    for j0 in range(0, 8, 2):
        Zs = {}; Ps = {}
        for dj in range(2):
            Zs[dj] = 116 + 8*dj; Ps[dj] = 120 + 8*dj
        for dj in range(2):
            for h in (0,2): pk("fma", Zs[dj]+h, AR(j0+dj,h), Q[h], M[h])
        for dj in range(2):
            for h in (0,2): pk("mul", Ps[dj]+h, Zs[dj]+h, Zs[dj]+h)
        for dj in range(2):
            for h in (0,2): pk("fma", Ps[dj]+h, Ps[dj]+h, 108, 110)
        for dj in range(2):
            for h in (0,2): pk("mul", Ps[dj]+h, Ps[dj]+h, Zs[dj]+h)
        for dj in range(2):
            for i in range(4): e(f"v_exp_f32 v{Ps[dj]+i}, v{Ps[dj]+i}")
        for dj in range(2):
            for h in (0,2): pk("add", Ps[dj]+h, Ps[dj]+h, 112)
        for dj in range(2):
            for i in range(4): e(f"v_rcp_f32 v{Ps[dj]+i}, v{Ps[dj]+i}")
        for dj in range(2):
            for h in (0,2): pk("mul", Zs[dj]+h, Zs[dj]+h, Ps[dj]+h)
        for dj in range(2):
            j = j0 + dj
            o = 136 + 2*j
            e(f"v_cvt_pk_bf16_f32 v{o}, v{Zs[dj]}, v{Zs[dj]+1}")
            e(f"v_cvt_pk_bf16_f32 v{o+1}, v{Zs[dj]+2}, v{Zs[dj]+3}")
            if j < 4:
                e(f"buffer_store_dwordx2 v[{o}:{o+1}], v13, s[36:39], 0 offen offset:{j*1024}")
            else:
                e(f"buffer_store_dwordx2 v[{o}:{o+1}], v13, s[36:39], s47 offen offset:{(j-4)*1024}")
    if STAMP:
        e("s_waitcnt vmcnt(0)")
        stamp(7)
        e("s_waitcnt lgkmcnt(0)")
        e("s_cmp_eq_u32 s23, 0")
        e("s_cbranch_scc0 L_nostamp")
        for kk in range(8): e(f"v_mov_b32 v{100+kk}, s{80+2*kk}")
        e("v_mov_b32 v108, s96")
        e("v_mov_b32 v109, s98")
        e("s_getreg_b32 s60, hwreg(HW_REG_XCC_ID)")
        e("v_mov_b32 v110, s60")
        e("v_mov_b32 v111, 0")
        e("s_lshl_b32 s60, s2, 7")
        e("s_add_u32 s60, s60, 0x100000")
        e("s_mov_b32 s42, 0x200000")
        e("v_mov_b32 v14, 0")
        e("s_mov_b64 exec, 1")
        e("buffer_store_dwordx4 v[100:103], v14, s[40:43], s60 offen")
        e("buffer_store_dwordx4 v[104:107], v14, s[40:43], s60 offen offset:16")
        e("buffer_store_dwordx4 v[108:111], v14, s[40:43], s60 offen offset:32")
        lab("L_nostamp")
    e("s_endpgm")

    lab("L_producer")
    c("=== producer === pw = wave-4 (s24); g = lane>>3 (v10); pos = lane&7 (v11)")
    e("s_sub_u32 s24, s23, 4")
    e("v_lshrrev_b32 v10, 3, v0")
    e("v_and_b32 v11, 7, v0")
    e("v_and_b32 v12, 2, v10")
    e("s_and_b32 s25, s24, 1")
    e("s_lshl_b32 s25, s25, 2")
    e("v_or_b32 v12, s25, v12")
    e("v_xor_b32 v12, v12, v11")
    e("s_lshl_b32 s25, s24, 3")
    e("v_add_u32 v13, s25, v10")
    e("v_lshlrev_b32 v13, 10, v13")
    e("v_lshl_add_u32 v2, v12, 4, v13")
    e("s_lshl_b32 s25, s24, 1")
    for i in range(5):
        e(f"v_add_u32 v12, {8*i}, v10")
        e("v_cmp_le_u32 vcc, 17, v12")
        e("v_subrev_u32 v13, 17, v12")
        e("v_mov_b32 v14, s25")
        e("v_cndmask_b32 v12, v12, v13, vcc")
        e("v_addc_co_u32 v14, vcc, 0, v14, vcc")
        e("v_mul_u32_u24 v16, 3, v12")
        e("v_lshrrev_b64 v[16:17], v16, s[26:27]")
        e("v_and_b32 v16, 7, v16")
        e("v_xor_b32 v16, v16, v11")
        e("v_lshl_add_u32 v12, v12, 3, v14")
        e("v_lshlrev_b32 v12, 11, v12")
        e(f"v_lshl_add_u32 v{3+i}, v16, 4, v12")
    e("s_mul_i32 s48, s20, 4000")
    e("s_lshl_b32 s50, s22, 8")
    e("s_add_u32 s48, s48, s50")
    e("s_lshl_b32 s48, s48, 10")
    e("s_lshl_b32 s49, s21, 7")
    e("s_lshl_b32 s52, s24, 10")
    e("s_mul_i32 s53, s24, 4352")
    def issueA(p):
        e(f"s_add_u32 s54, s48, {p*1024}")
        for i in range(5):
            e(f"s_add_u32 m0, s53, {ASLOT[p] + i*1024}")
            if i == 4: e("s_mov_b64 exec, 0xffff")
            else: e("s_nop 0")
            e(f"buffer_load_dwordx4 v{3+i}, s[28:31], s54 offen lds")
        e("s_mov_b64 exec, -1")
    def issueB(T):
        p, hh = T >> 1, T & 1
        for a in range(nT(T)):
            e(f"s_add_u32 m0, s52, {BSLOT[T] + a*4096}")
            e(f"s_add_u32 s54, s49, {(2*a+p)*524288 + hh*32768}")
            e("buffer_load_dwordx4 v2, s[32:35], s54 offen lds")
    issueA(0); issueB(0); issueB(1); issueB(2); issueA(1); issueB(3)
    e("s_waitcnt vmcnt(27)")
    e("s_barrier")
    e("s_waitcnt vmcnt(19)")
    e("s_barrier")
    e("s_mov_b32 s50, 0")
    lab("L_ploop")
    e("s_add_u32 s48, s48, 128")
    e("s_add_u32 s49, s49, 65536")
    W = [15, 21, 15, 19]
    for T in range(4):
        if T & 1: issueA(T >> 1)
        issueB(T)
        if T == 3:
            e("s_add_u32 s50, s50, 1")
            e("s_cmp_lt_u32 s50, 7")
        e(f"s_waitcnt vmcnt({W[T]})")
        e("s_barrier")
    e("s_cbranch_scc1 L_ploop")
    e("s_waitcnt vmcnt(7)")
    e("s_barrier")
    e("s_waitcnt vmcnt(0)")
    e("s_barrier")
    lab("L_end")
    e("s_endpgm")
    out.append('.section .rodata,"a"')
    out.append(".p2align 6")
    out.append(f".amdhsa_kernel {NAME}_kernel")
    out.append("  .amdhsa_next_free_vgpr 248")
    out.append("  .amdhsa_next_free_sgpr 102")
    out.append("  .amdhsa_accum_offset 248")
    out.append("  .amdhsa_group_segment_fixed_size 0")
    out.append("  .amdhsa_kernarg_size 64")
    out.append("  .amdhsa_user_sgpr_count 2")
    out.append("  .amdhsa_user_sgpr_kernarg_segment_ptr 1")
    out.append("  .amdhsa_system_sgpr_workgroup_id_x 1")
    out.append("  .amdhsa_float_denorm_mode_32 3")
    out.append(".end_amdhsa_kernel")
    return "\n".join(out) + "\n"

if __name__ == "__main__":
    t = gen()
    args = [a for a in sys.argv[1:] if not a.startswith("-")]
    path = args[0] if args else f"cdna_kernels/{NAME}.s"
    open(path, "w").write(t)
    print("wrote", path, len(t))
```

```python
import sys, struct, math

NAME = "standalone__self_sup_conv_stem_hubert__speech"
HEADER = """; Kernarg layout for this problem (64 bytes, ptrs only, base s[0:1]):
"""
OPT = set(a for a in sys.argv[1:] if a.startswith("-"))
STAMP = "-stamp" in OPT
NOPF = "-nopf" in OPT

ASLOT = [0, 17408]
BSLOT = [34816, 34816+32768, 34816+65536, 34816+65536+28672]
LDS_BYTES = BSLOT[3] + 28672
HT = 0x2f30ba77102c2

out = []
def e(s): out.append("    " + s)
def lab(s): out.append(s + ":")
def c(s): out.append("    ; " + s)
def stamp(k):
    if STAMP: e(f"s_memrealtime s[{80+2*k}:{81+2*k}]")
def f2u(x): return struct.unpack("<I", struct.pack("<f", x))[0]
def nT(T): return 8 - (T >> 1)

VA = {(0,0):2, (0,1):3, (1,0):4, (1,1):5}
VB = [6,7,8,9]
ACC = 16
FS = [48, 108]
BS = [168, 200]
def acc(j): return f"v[{ACC+4*j}:{ACC+4*j+3}]"
def F(s,t): return f"v[{FS[s]+4*t}:{FS[s]+4*t+3}]"
def Bf(s,a): return f"v[{BS[s]+4*a}:{BS[s]+4*a+3}]"

def reads_for(T, s):
    p, hh = T >> 1, T & 1
    n = nT(T)
    rA = []
    for t in range(n + 7):
        phi, sh = t & 7, t >> 3
        rA.append(f"ds_read_b128 {F(s,t)}, v{VA[(sh,hh)]} offset:{ASLOT[p] + 17*phi*128}")
    rB = []
    for a in range(n):
        b0 = BS[s] + 4*a
        rB.append([f"ds_read_b64_tr_b16 v[{b0}:{b0+1}], v{VB[T]} offset:{a*4096}",
                   f"ds_read_b64_tr_b16 v[{b0+2}:{b0+3}], v{VB[T]} offset:{a*4096+512}"])
    seq = rB[0] + rA[:8]
    for a in range(1, n):
        seq += rB[a] + [rA[7+a]]
    return seq

def gen():
    out.append(HEADER.rstrip("\n"))
    out.append(f"; @launch grid=(256,1,1) block=(512,1,1) lds={LDS_BYTES}")
    out.append('.amdgcn_target "amdgcn-amd-amdhsa--gfx950"')
    out.append(".text")
    out.append(f".globl {NAME}_kernel")
    out.append(".p2align 8")
    out.append(f".type {NAME}_kernel,@function")
    lab(f"{NAME}_kernel")
    e("s_cmp_ge_u32 s2, 256")
    e("s_cbranch_scc1 L_end")
    e("s_load_dwordx4 s[4:7], s[0:1], 0")
    e("s_load_dwordx4 s[8:11], s[0:1], 16")
    e("s_load_dwordx4 s[12:15], s[0:1], 32")
    e("s_load_dwordx4 s[16:19], s[0:1], 48")
    c("decode workgroup: xcd = wg&7, idx = wg>>3; batch = xcd>>2; ntile = (xcd&3)*2 + (idx&1); mtile = idx>>1")
    e("s_and_b32 s24, s2, 7")
    e("s_lshr_b32 s25, s2, 3")
    e("s_lshr_b32 s20, s24, 2")
    e("s_and_b32 s21, s24, 3")
    e("s_lshl_b32 s21, s21, 1")
    e("s_and_b32 s26, s25, 1")
    e("s_add_u32 s21, s21, s26")
    e("s_lshr_b32 s22, s25, 1")
    e("v_lshrrev_b32 v1, 6, v0")
    e("v_and_b32 v0, 63, v0")
    e("s_nop 0")
    e("v_readfirstlane_b32 s23, v1")
    e("s_mov_b32 s26, 0x%x" % (HT & 0xffffffff))
    e("s_mov_b32 s27, 0x%x" % (HT >> 32))
    e("s_waitcnt lgkmcnt(0)")
    c("SRDs: x s[28:31], w s[32:35]")
    e("s_mov_b32 s28, s4")
    e("s_and_b32 s29, s5, 0xffff")
    e("s_mov_b32 s30, 8192000")
    e("s_mov_b32 s31, 0x00020000")
    e("s_mov_b32 s32, s6")
    e("s_and_b32 s33, s7, 0xffff")
    e("s_mov_b32 s34, 7864320")
    e("s_mov_b32 s35, 0x00020000")
    e("s_cmp_ge_u32 s23, 4")
    e("s_cbranch_scc1 L_producer")

    c("=== consumer ===")
    stamp(0)
    c("v0 = lane; tau = lane&15 (v10), kq = lane>>4 (v11)")
    e("v_and_b32 v10, 15, v0")
    e("v_lshrrev_b32 v11, 4, v0")
    c("ws SRD s[40:43]; group s56; own slot offset s58; group base s57")
    e("s_mov_b32 s40, s18")
    e("s_and_b32 s41, s19, 0xffff")
    e("s_mov_b32 s42, 131072")
    e("s_mov_b32 s43, 0x00020000")
    e("s_lshl_b32 s56, s20, 3")
    e("s_add_u32 s56, s56, s21")
    e("s_lshl_b32 s57, s56, 13")
    e("s_lshl_b32 s59, s23, 7")
    e("s_add_u32 s57, s57, s59")
    e("s_lshl_b32 s58, s22, 9")
    e("s_add_u32 s58, s58, s57")
    c("clear own slot with the marker (lanes tau<2)")
    e("v_lshlrev_b32 v13, 5, v11")
    e("v_lshl_add_u32 v240, v10, 4, v13")
    e("v_lshl_add_u32 v241, v10, 9, v13")
    for i in range(4): e(f"v_mov_b32 v{64+i}, -1")
    e("s_mov_b32 exec_lo, 0x00030003")
    e("s_mov_b32 exec_hi, 0x00030003")
    e("buffer_store_dwordx4 v[64:67], v240, s[40:43], s58 offen sc1")
    e("s_mov_b64 exec, -1")
    c("param loads: channel = n0 + 16*w + 4*kq -> byte off")
    e("s_lshl_b32 s48, s21, 7")
    e("s_lshl_b32 s49, s23, 5")
    e("s_add_u32 s48, s48, s49")
    e("v_lshlrev_b32 v12, 3, v11")
    e("v_add_u32 v12, s48, v12")
    e("global_load_dwordx2 v[232:233], v12, s[8:9]")
    e("global_load_dwordx2 v[234:235], v12, s[10:11]")
    e("global_load_dwordx2 v[236:237], v12, s[12:13]")
    npf = 0
    PFD = 2
    for o in OPT:
        if o.startswith("-pfd"): PFD = int(o[4:])
    if not NOPF and "-pflin" in OPT:
        c("linear prefetch offsets: L = wg*32 + w*8 + lane (lane<8)")
        e("s_lshl_b32 s50, s2, 5")
        e("s_lshl_b32 s51, s23, 3")
        e("s_add_u32 s50, s50, s51")
        e("v_add_u32 v13, s50, v0")
        e("v_cmp_gt_u32 vcc, 8, v0")
        e("v_lshrrev_b32 v14, 9, v13")
        e("v_lshlrev_b32 v14, 19, v14")
        e("v_and_b32 v15, 511, v13")
        e("v_lshl_add_u32 v14, v15, 7, v14")
        e("v_lshlrev_b32 v15, 10, v13")
        e("v_mov_b32 v1, 0x7fffff00")
        e("v_cndmask_b32 v242, v1, v14, vcc")
        e("v_cndmask_b32 v243, v1, v15, vcc")
    elif not NOPF:
        c("XCD-local L2 prefetch offsets: u = (wg>>3)*4 + w")
        e("s_lshr_b32 s50, s2, 3")
        e("s_lshl_b32 s50, s50, 2")
        e("s_add_u32 s50, s50, s23")
        e("v_mov_b32 v1, 0x7fffff00")
        c("x: row = u*32 + lane (lane<32, row<4000)")
        e("s_lshl_b32 s51, s50, 5")
        e("v_add_u32 v13, s51, v0")
        e("v_cmp_gt_u32 vcc, 4000, v13")
        e("v_cmp_gt_u32 s[60:61], 32, v0")
        e("s_mul_i32 s51, s20, 4000")
        e("v_add_u32 v13, s51, v13")
        e("v_lshlrev_b32 v13, 10, v13")
        e("s_and_b64 vcc, vcc, s[60:61]")
        e("s_nop 1")
        e("v_cndmask_b32 v243, v1, v13, vcc")
        c("w: L = u*16 + lane (lane<16): tap = L>>7, row = (L>>1)&63, half = L&1")
        e("s_lshl_b32 s51, s50, 4")
        e("v_add_u32 v13, s51, v0")
        e("v_cmp_gt_u32 vcc, 16, v0")
        e("v_lshrrev_b32 v14, 7, v13")
        e("v_lshlrev_b32 v14, 19, v14")
        e("v_bfe_u32 v15, v13, 1, 6")
        e("v_lshl_add_u32 v14, v15, 10, v14")
        e("v_and_b32 v15, 1, v13")
        e("v_lshl_add_u32 v14, v15, 7, v14")
        e("s_and_b32 s51, s21, 6")
        e("s_lshl_b32 s51, s51, 7")
        e("v_add_u32 v14, s51, v14")
        e("v_cndmask_b32 v242, v1, v14, vcc")
    if not NOPF:
        e("s_mov_b32 s78, 0")
        e("s_mov_b32 s79, 0")
        for d in range(PFD - 1):
            e("s_add_u32 s78, s78, 65536")
            e("s_add_u32 s79, s79, 128")
            e("buffer_load_dword v238, v242, s[32:35], s78 offen")
            e("buffer_load_dword v239, v243, s[28:31], s79 offen")
            npf += 2
    c("A (x) read addresses")
    for sh in range(2):
        e(f"v_add_u32 v13, {sh}, v10")
        e("v_mul_u32_u24 v14, 3, v13")
        e("v_lshrrev_b64 v[14:15], v14, s[26:27]")
        e("v_and_b32 v14, 7, v14")
        e("v_xor_b32 v14, v14, v11")
        e("v_lshlrev_b32 v13, 7, v13")
        e("v_lshl_add_u32 v%d, v14, 4, v13" % VA[(sh,0)])
        e("v_xor_b32 v14, 4, v14")
        e("v_lshl_add_u32 v%d, v14, 4, v13" % VA[(sh,1)])
    c("B (w) read addresses")
    e("v_lshrrev_b32 v13, 2, v10")
    e("v_and_b32 v14, 3, v0")
    e("v_lshrrev_b32 v15, 1, v13")
    e("v_and_b32 v1, 1, v11")
    e("v_lshl_or_b32 v15, v1, 1, v15")
    e("v_xor_b32 v15, s23, v15")
    e("v_lshl_add_u32 v13, v11, 3, v13")
    e("v_lshlrev_b32 v13, 7, v13")
    e("v_lshl_add_u32 v13, v15, 5, v13")
    e("v_lshl_add_u32 v13, v14, 3, v13")
    for T in range(4):
        e(f"v_add_u32 v{VB[T]}, {BSLOT[T]}, v13")
    c("init acc with bias (this wait also covers the clear store)")
    e(f"s_waitcnt vmcnt({2+npf})")
    e("v_lshlrev_b32 v13, 16, v232")
    e("v_and_b32 v14, 0xffff0000, v232")
    e("v_lshlrev_b32 v15, 16, v233")
    e("v_and_b32 v1, 0xffff0000, v233")
    for j in range(8):
        e(f"v_mov_b32 v{ACC+4*j}, v13")
        e(f"v_mov_b32 v{ACC+4*j+1}, v14")
        e(f"v_mov_b32 v{ACC+4*j+2}, v15")
        e(f"v_mov_b32 v{ACC+4*j+3}, v1")
    e("s_lshl_b32 s59, s56, 2")
    e("s_add_u32 s59, s59, 128")
    e("v_mov_b32 v244, s59")
    e("s_barrier")
    stamp(1)
    for r in reads_for(0, 0): e(r)
    c("wave 0: signal 'cleared'")
    e("s_cmp_eq_u32 s23, 0")
    e("s_cbranch_scc0 L_nosig")
    e("v_mov_b32 v15, 1")
    e("s_mov_b64 exec, 1")
    e("global_atomic_add v244, v15, s[16:17] sc1")
    e("s_mov_b64 exec, -1")
    lab("L_nosig")
    e("s_mov_b32 s50, 0")
    e("s_waitcnt lgkmcnt(0)")
    e("s_barrier")
    stamp(2)
    if STAMP: e("s_memtime s[96:97]")
    lab("L_cloop")
    for T in range(4):
        s = T & 1
        Tn = (T + 1) & 3
        rd = reads_for(Tn, s ^ 1)
        pos = {}
        for k, r in enumerate(rd):
            pos.setdefault((k * 3) // 2, []).append(r)
        m = 0
        c(f"phase type {T}")
        order = [(a, j) for a in range(nT(T)) for j in range(8)]
        if "-jmajor" in OPT: order = [(a, j) for j in range(8) for a in range(nT(T))]
        for (a, j) in order:
            e(f"v_mfma_f32_16x16x32_bf16 {acc(j)}, {Bf(s,a)}, {F(s,j+a)}, {acc(j)}")
            for r in pos.get(m, []): e(r)
            if T == 0 and m == 50 and not NOPF:
                e(f"s_cmp_lt_u32 s50, {8-PFD}")
                e("s_cbranch_scc0 L_nopf")
                e("s_add_u32 s78, s78, 65536")
                e("s_add_u32 s79, s79, 128")
                e("buffer_load_dword v238, v242, s[32:35], s78 offen")
                e("buffer_load_dword v239, v243, s[28:31], s79 offen")
                lab("L_nopf")
            m += 1
        if T == 3:
            e("s_add_u32 s50, s50, 1")
            e("s_cmp_lt_u32 s50, 8")
        e("s_waitcnt lgkmcnt(0)")
        e("s_barrier")
    e("s_cbranch_scc1 L_cloop")

    c("=== epilogue ===")
    stamp(3)
    if STAMP: e("s_memtime s[98:99]")
    A = lambda j,i: f"v{ACC+4*j+i}"
    S = [48,49,50,51]; M = [52,53,54,55]; Q = [56,57,58,59]; TMP = [60,61,62,63]; PUB=[64,65,66,67]
    e("global_load_dword v245, v244, s[16:17] sc1")
    e("s_lshl_b32 s51, s22, 7")
    e("s_sub_u32 s52, 1993, s51")
    e("v_lshlrev_b32 v13, 3, v10")
    e("v_sub_u32 v13, s52, v13")
    for j in range(8):
        e(f"v_cmp_lt_i32 s[{60+2*j}:{61+2*j}], {j}, v13")
    e("v_cmp_eq_u32 s[54:55], 1, v10")
    e("s_mov_b32 s53, 0x%08x" % f2u(1.0/128))
    e("s_cmp_eq_u32 s22, 15")
    e("s_cbranch_scc0 L_nomask1")
    e("s_mov_b32 s53, 0x%08x" % f2u(1.0/73))
    for j in range(8):
        for i in range(4):
            e(f"v_cndmask_b32 {A(j,i)}, 0, {A(j,i)}, s[{60+2*j}:{61+2*j}]")
    lab("L_nomask1")
    def pk(op, d, a, b, cc=None):
        if cc is None: e(f"v_pk_{op}_f32 v[{d}:{d+1}], v[{a}:{a+1}], v[{b}:{b+1}]")
        else: e(f"v_pk_{op}_f32 v[{d}:{d+1}], v[{a}:{a+1}], v[{b}:{b+1}], v[{cc}:{cc+1}]")
    AR = lambda j,i: ACC+4*j+i
    for h in (0,2): pk("add", S[h], AR(0,h), AR(1,h))
    for h in (0,2): pk("add", TMP[h], AR(2,h), AR(3,h))
    for h in (0,2): pk("add", M[h], AR(4,h), AR(5,h))
    for h in (0,2): pk("add", Q[h], AR(6,h), AR(7,h))
    for h in (0,2): pk("add", S[h], S[h], TMP[h])
    for h in (0,2): pk("add", M[h], M[h], Q[h])
    for h in (0,2): pk("add", S[h], S[h], M[h])
    e("s_nop 0")
    def allred(R):
        for sh in (8,4,2,1):
            for i in range(4):
                e(f"v_add_f32_dpp v{R[i]}, v{R[i]}, v{R[i]} row_ror:{sh} row_mask:0xf bank_mask:0xf")
    allred(S)
    for i in range(4): e(f"v_mul_f32 v{M[i]}, s53, v{S[i]}")
    e("s_cmp_eq_u32 s22, 15")
    e("s_cbranch_scc0 L_nomask2")
    for j in range(8):
        for i in range(4):
            e(f"v_cndmask_b32 {A(j,i)}, v{M[i]}, {A(j,i)}, s[{60+2*j}:{61+2*j}]")
    lab("L_nomask2")
    for j in range(8):
        for h in (0,2): e(f"v_pk_add_f32 v[{TMP[h]}:{TMP[h]+1}], v[{AR(j,h)}:{AR(j,h)+1}], v[{M[h]}:{M[h]+1}] neg_lo:[0,1] neg_hi:[0,1]")
        for h in (0,2):
            if j == 0: pk("mul", Q[h], TMP[h], TMP[h])
            else: pk("fma", Q[h], TMP[h], TMP[h], Q[h])
    e("s_nop 0")
    allred(Q)
    c("publish partials (never the marker pattern)")
    for i in range(4): e(f"v_cndmask_b32 v{PUB[i]}, v{S[i]}, v{Q[i]}, s[54:55]")
    for i in range(4): e(f"v_min_u32 v{PUB[i]}, -2, v{PUB[i]}")
    e("s_mov_b32 exec_lo, 0x00030003")
    e("s_mov_b32 exec_hi, 0x00030003")
    e(f"buffer_store_dwordx4 v[{PUB[0]}:{PUB[3]}], v240, s[40:43], s58 offen sc1")
    e("s_mov_b64 exec, -1")
    stamp(4)
    c("constants while waiting")
    e("v_cmp_eq_u32 s[54:55], 15, v10")
    e("v_mov_b32 v76, 0x43000000")
    e("v_mov_b32 v77, 0x42920000")
    e("v_mov_b32 v78, 0x%08x" % f2u(1.0/128))
    e("v_mov_b32 v79, 0x%08x" % f2u(1.0/73))
    e("v_cndmask_b32 v76, v76, v77, s[54:55]")
    e("v_cndmask_b32 v78, v78, v79, s[54:55]")
    e("s_mul_i32 s44, s20, 2040832")
    e("s_add_u32 s36, s14, s44")
    e("s_addc_u32 s37, s15, 0")
    e("s_and_b32 s37, s37, 0xffff")
    e("s_mov_b32 s38, 2040832")
    e("s_mov_b32 s39, 0x00020000")
    e("s_mov_b32 s45, 0x%08x" % f2u(1.0/1993))
    e("s_mov_b32 s46, 0x%08x" % f2u(1e-5))
    e("v_lshlrev_b32 v100, 16, v234")
    e("v_and_b32 v101, 0xffff0000, v234")
    e("v_lshlrev_b32 v102, 16, v235")
    e("v_and_b32 v103, 0xffff0000, v235")
    e("v_lshlrev_b32 v104, 16, v236")
    e("v_and_b32 v105, 0xffff0000, v236")
    e("v_lshlrev_b32 v106, 16, v237")
    e("v_and_b32 v107, 0xffff0000, v237")
    e("v_lshlrev_b32 v13, 3, v10")
    e("v_add_u32 v13, s51, v13")
    e("v_lshlrev_b32 v13, 10, v13")
    e("v_add_u32 v13, v13, v12")
    e("s_mov_b32 s47, 4096")
    k = -2.0 * math.sqrt(2.0/math.pi) * math.log2(math.e)
    e("v_mov_b32 v108, 0x%08x" % f2u(k * 0.044715))
    e("v_mov_b32 v109, 0x%08x" % f2u(k * 0.044715))
    e("v_mov_b32 v110, 0x%08x" % f2u(k))
    e("v_mov_b32 v111, 0x%08x" % f2u(k))
    e("v_mov_b32 v112, 1.0")
    e("v_mov_b32 v113, 1.0")
    e("v_mov_b32 v14, s46")
    e("s_mov_b32 s76, 0x10000")
    c("wait: all workgroups of the group have cleared their slots in this launch")
    e("s_waitcnt vmcnt(1)")
    lab("L_cpoll")
    e("v_readfirstlane_b32 s77, v245")
    e("s_cmp_ge_u32 s77, 16")
    e("s_cbranch_scc1 L_dstart")
    e("s_sub_u32 s76, s76, 1")
    e("s_cbranch_scc1 L_dstart")
    e("s_sleep 2")
    e("global_load_dword v245, v244, s[16:17] sc1")
    e("s_waitcnt vmcnt(0)")
    e("s_branch L_cpoll")
    lab("L_dstart")
    e("s_mov_b32 s76, 0x10000")
    lab("L_dpoll")
    e("buffer_load_dwordx4 v[68:71], v241, s[40:43], s57 offen sc1")
    e("buffer_load_dwordx4 v[72:75], v241, s[40:43], s57 offen offset:16 sc1")
    e("s_waitcnt vmcnt(0)")
    e("v_max3_u32 v15, v68, v69, v70")
    e("v_max3_u32 v1, v71, v72, v73")
    e("v_max3_u32 v15, v15, v74, v75")
    e("v_max_u32 v15, v15, v1")
    e("v_cmp_eq_u32 vcc, -1, v15")
    e("s_cbranch_vccz L_ddone")
    e("s_sub_u32 s76, s76, 1")
    e("s_cbranch_scc0 L_dpoll")
    lab("L_ddone")
    stamp(5)
    PS = [68,69,70,71]; PM = [72,73,74,75]
    for i in range(4): e(f"v_mov_b32 v{S[i]}, v{PS[i]}")
    allred(S)
    for i in range(4): e(f"v_mul_f32 v{M[i]}, s45, v{S[i]}")
    for i in range(4): e(f"v_fma_f32 v{TMP[i]}, v{PS[i]}, v78, -v{M[i]}")
    for i in range(4): e(f"v_mul_f32 v{TMP[i]}, v{TMP[i]}, v{TMP[i]}")
    for i in range(4): e(f"v_fma_f32 v{Q[i]}, v{TMP[i]}, v76, v{PM[i]}")
    allred(Q)
    for i in range(4): e(f"v_fma_f32 v{Q[i]}, v{Q[i]}, s45, v14")
    for i in range(4): e(f"v_rsq_f32 v{Q[i]}, v{Q[i]}")
    e("s_nop 0")
    for i in range(4): e(f"v_mul_f32 v{Q[i]}, v{Q[i]}, v{100+i}")
    for i in range(4): e(f"v_fma_f32 v{M[i]}, -v{M[i]}, v{Q[i]}, v{104+i}")
    stamp(6)
    for j0 in range(0, 8, 2):
        Zs = {}; Ps = {}
        for dj in range(2):
            Zs[dj] = 116 + 8*dj; Ps[dj] = 120 + 8*dj
        for dj in range(2):
            for h in (0,2): pk("fma", Zs[dj]+h, AR(j0+dj,h), Q[h], M[h])
        for dj in range(2):
            for h in (0,2): pk("mul", Ps[dj]+h, Zs[dj]+h, Zs[dj]+h)
        for dj in range(2):
            for h in (0,2): pk("fma", Ps[dj]+h, Ps[dj]+h, 108, 110)
        for dj in range(2):
            for h in (0,2): pk("mul", Ps[dj]+h, Ps[dj]+h, Zs[dj]+h)
        for dj in range(2):
            for i in range(4): e(f"v_exp_f32 v{Ps[dj]+i}, v{Ps[dj]+i}")
        for dj in range(2):
            for h in (0,2): pk("add", Ps[dj]+h, Ps[dj]+h, 112)
        for dj in range(2):
            for i in range(4): e(f"v_rcp_f32 v{Ps[dj]+i}, v{Ps[dj]+i}")
        for dj in range(2):
            for h in (0,2): pk("mul", Zs[dj]+h, Zs[dj]+h, Ps[dj]+h)
        for dj in range(2):
            j = j0 + dj
            o = 136 + 2*j
            e(f"v_cvt_pk_bf16_f32 v{o}, v{Zs[dj]}, v{Zs[dj]+1}")
            e(f"v_cvt_pk_bf16_f32 v{o+1}, v{Zs[dj]+2}, v{Zs[dj]+3}")
            if j < 4:
                e(f"buffer_store_dwordx2 v[{o}:{o+1}], v13, s[36:39], 0 offen offset:{j*1024}")
            else:
                e(f"buffer_store_dwordx2 v[{o}:{o+1}], v13, s[36:39], s47 offen offset:{(j-4)*1024}")
    if STAMP:
        e("s_waitcnt vmcnt(0)")
        stamp(7)
        e("s_waitcnt lgkmcnt(0)")
        e("s_cmp_eq_u32 s23, 0")
        e("s_cbranch_scc0 L_nostamp")
        for kk in range(8): e(f"v_mov_b32 v{100+kk}, s{80+2*kk}")
        e("v_mov_b32 v108, s96")
        e("v_mov_b32 v109, s98")
        e("s_getreg_b32 s60, hwreg(HW_REG_XCC_ID)")
        e("v_mov_b32 v110, s60")
        e("v_mov_b32 v111, 0")
        e("s_lshl_b32 s60, s2, 7")
        e("s_add_u32 s60, s60, 0x100000")
        e("s_mov_b32 s42, 0x200000")
        e("v_mov_b32 v14, 0")
        e("s_mov_b64 exec, 1")
        e("buffer_store_dwordx4 v[100:103], v14, s[40:43], s60 offen")
        e("buffer_store_dwordx4 v[104:107], v14, s[40:43], s60 offen offset:16")
        e("buffer_store_dwordx4 v[108:111], v14, s[40:43], s60 offen offset:32")
        if "-dbgstamp" in OPT:
            e("s_cmp_eq_u32 s2, 0")
            e("s_cselect_b32 s60, 0, 32")
            e("s_cmp_eq_u32 s2, 9")
            e("s_cselect_b32 s61, 1, 0")
            e("s_cmp_eq_u32 s2, 0")
            e("s_cselect_b32 s61, 1, s61")
            e("s_cmp_eq_u32 s61, 1")
            e("s_cbranch_scc0 L_nostamp")
            for kk in range(1, 8): e(f"v_subrev_u32 v{100+kk}, s80, v{100+kk}")
            e("v_mov_b32 v14, s60")
            e("global_store_dwordx4 v14, v[100:103], s[16:17]")
            e("global_store_dwordx4 v14, v[104:107], s[16:17] offset:16")
        lab("L_nostamp")
    e("s_endpgm")

    lab("L_producer")
    c("=== producer === pw = wave-4 (s24); g = lane>>3 (v10); pos = lane&7 (v11)")
    e("s_sub_u32 s24, s23, 4")
    e("v_lshrrev_b32 v10, 3, v0")
    e("v_and_b32 v11, 7, v0")
    e("v_and_b32 v12, 2, v10")
    e("s_and_b32 s25, s24, 1")
    e("s_lshl_b32 s25, s25, 2")
    e("v_or_b32 v12, s25, v12")
    e("v_xor_b32 v12, v12, v11")
    e("s_lshl_b32 s25, s24, 3")
    e("v_add_u32 v13, s25, v10")
    e("v_lshlrev_b32 v13, 10, v13")
    e("v_lshl_add_u32 v2, v12, 4, v13")
    e("s_lshl_b32 s25, s24, 1")
    for i in range(5):
        e(f"v_add_u32 v12, {8*i}, v10")
        e("v_cmp_le_u32 vcc, 17, v12")
        e("v_subrev_u32 v13, 17, v12")
        e("v_mov_b32 v14, s25")
        e("v_cndmask_b32 v12, v12, v13, vcc")
        e("v_addc_co_u32 v14, vcc, 0, v14, vcc")
        e("v_mul_u32_u24 v16, 3, v12")
        e("v_lshrrev_b64 v[16:17], v16, s[26:27]")
        e("v_and_b32 v16, 7, v16")
        e("v_xor_b32 v16, v16, v11")
        e("v_lshl_add_u32 v12, v12, 3, v14")
        e("v_lshlrev_b32 v12, 11, v12")
        e(f"v_lshl_add_u32 v{3+i}, v16, 4, v12")
    e("s_mul_i32 s48, s20, 4000")
    e("s_lshl_b32 s50, s22, 8")
    e("s_add_u32 s48, s48, s50")
    e("s_lshl_b32 s48, s48, 10")
    e("s_lshl_b32 s49, s21, 7")
    e("s_lshl_b32 s52, s24, 10")
    e("s_mul_i32 s53, s24, 4352")
    def issueA(p):
        e(f"s_add_u32 s54, s48, {p*1024}")
        for i in range(5):
            e(f"s_add_u32 m0, s53, {ASLOT[p] + i*1024}")
            if i == 4: e("s_mov_b64 exec, 0xffff")
            else: e("s_nop 0")
            e(f"buffer_load_dwordx4 v{3+i}, s[28:31], s54 offen lds")
        e("s_mov_b64 exec, -1")
    def issueB(T):
        p, hh = T >> 1, T & 1
        for a in range(nT(T)):
            e(f"s_add_u32 m0, s52, {BSLOT[T] + a*4096}")
            e(f"s_add_u32 s54, s49, {(2*a+p)*524288 + hh*32768}")
            e("buffer_load_dwordx4 v2, s[32:35], s54 offen lds")
    issueA(0); issueB(0); issueB(1); issueB(2); issueA(1); issueB(3)
    e("s_waitcnt vmcnt(27)")
    e("s_barrier")
    e("s_waitcnt vmcnt(19)")
    e("s_barrier")
    e("s_mov_b32 s50, 0")
    lab("L_ploop")
    e("s_add_u32 s48, s48, 128")
    e("s_add_u32 s49, s49, 65536")
    W = [15, 21, 15, 19]
    for T in range(4):
        if T & 1: issueA(T >> 1)
        issueB(T)
        if T == 3:
            e("s_add_u32 s50, s50, 1")
            e("s_cmp_lt_u32 s50, 7")
        e(f"s_waitcnt vmcnt({W[T]})")
        e("s_barrier")
    e("s_cbranch_scc1 L_ploop")
    e("s_waitcnt vmcnt(7)")
    e("s_barrier")
    e("s_waitcnt vmcnt(0)")
    e("s_barrier")
    lab("L_end")
    e("s_endpgm")
    out.append('.section .rodata,"a"')
    out.append(".p2align 6")
    out.append(f".amdhsa_kernel {NAME}_kernel")
    out.append("  .amdhsa_next_free_vgpr 248")
    out.append("  .amdhsa_next_free_sgpr 102")
    out.append("  .amdhsa_accum_offset 248")
    out.append("  .amdhsa_group_segment_fixed_size 0")
    out.append("  .amdhsa_kernarg_size 64")
    out.append("  .amdhsa_user_sgpr_count 2")
    out.append("  .amdhsa_user_sgpr_kernarg_segment_ptr 1")
    out.append("  .amdhsa_system_sgpr_workgroup_id_x 1")
    out.append("  .amdhsa_float_denorm_mode_32 3")
    out.append(".end_amdhsa_kernel")
    return "\n".join(out) + "\n"

if __name__ == "__main__":
    t = gen()
    args = [a for a in sys.argv[1:] if not a.startswith("-")]
    path = args[0] if args else f"cdna_kernels/{NAME}.s"
    open(path, "w").write(t)
    print("wrote", path, len(t))
```

```python
import sys, struct, math

NAME = "standalone__self_sup_conv_stem_hubert__speech"
HEADER = """; Kernarg layout for this problem (64 bytes, ptrs only, base s[0:1]):
"""
OPT = set(a for a in sys.argv[1:] if a.startswith("-"))
STAMP = "-stamp" in OPT
NOPF = "-nopf" in OPT
DMAF = "".join(" " + f for f in ("sc0", "sc1", "nt") if "-dma" + f in OPT)

ASLOT = [0, 17408]
BSLOT = [34816, 34816+32768, 34816+65536, 34816+65536+28672]
LDS_BYTES = BSLOT[3] + 28672
HT = 0x2f30ba77102c2

out = []
def e(s): out.append("    " + s)
def lab(s): out.append(s + ":")
def c(s): out.append("    ; " + s)
def stamp(k):
    if STAMP: e(f"s_memrealtime s[{80+2*k}:{81+2*k}]")
def f2u(x): return struct.unpack("<I", struct.pack("<f", x))[0]
def nT(T): return 8 - (T >> 1)

VA = {(0,0):2, (0,1):3, (1,0):4, (1,1):5}
VB = [6,7,8,9]
ACC = 16
FS = [48, 108]
BS = [168, 200]
def acc(j): return f"v[{ACC+4*j}:{ACC+4*j+3}]"
def F(s,t): return f"v[{FS[s]+4*t}:{FS[s]+4*t+3}]"
def Bf(s,a): return f"v[{BS[s]+4*a}:{BS[s]+4*a+3}]"

def reads_for(T, s):
    p, hh = T >> 1, T & 1
    n = nT(T)
    rA = []
    for t in range(n + 7):
        phi, sh = t & 7, t >> 3
        rA.append(f"ds_read_b128 {F(s,t)}, v{VA[(sh,hh)]} offset:{ASLOT[p] + 17*phi*128}")
    rB = []
    for a in range(n):
        b0 = BS[s] + 4*a
        rB.append([f"ds_read_b64_tr_b16 v[{b0}:{b0+1}], v{VB[T]} offset:{a*4096}",
                   f"ds_read_b64_tr_b16 v[{b0+2}:{b0+3}], v{VB[T]} offset:{a*4096+512}"])
    seq = rB[0] + rA[:8]
    for a in range(1, n):
        seq += rB[a] + [rA[7+a]]
    return seq

def gen():
    out.append(HEADER.rstrip("\n"))
    out.append(f"; @launch grid=(256,1,1) block=(512,1,1) lds={LDS_BYTES}")
    out.append('.amdgcn_target "amdgcn-amd-amdhsa--gfx950"')
    out.append(".text")
    out.append(f".globl {NAME}_kernel")
    out.append(".p2align 8")
    out.append(f".type {NAME}_kernel,@function")
    lab(f"{NAME}_kernel")
    e("s_cmp_ge_u32 s2, 256")
    e("s_cbranch_scc1 L_end")
    e("s_load_dwordx4 s[4:7], s[0:1], 0")
    e("s_load_dwordx4 s[8:11], s[0:1], 16")
    e("s_load_dwordx4 s[12:15], s[0:1], 32")
    e("s_load_dwordx4 s[16:19], s[0:1], 48")
    c("decode workgroup: xcd = wg&7, idx = wg>>3; batch = xcd>>2; ntile = (xcd&3)*2 + (idx&1); mtile = idx>>1")
    e("s_and_b32 s24, s2, 7")
    e("s_lshr_b32 s25, s2, 3")
    e("s_lshr_b32 s20, s24, 2")
    e("s_and_b32 s21, s24, 3")
    e("s_lshl_b32 s21, s21, 1")
    e("s_and_b32 s26, s25, 1")
    e("s_add_u32 s21, s21, s26")
    e("s_lshr_b32 s22, s25, 1")
    e("v_lshrrev_b32 v1, 6, v0")
    e("v_and_b32 v0, 63, v0")
    e("s_nop 0")
    e("v_readfirstlane_b32 s23, v1")
    e("s_mov_b32 s26, 0x%x" % (HT & 0xffffffff))
    e("s_mov_b32 s27, 0x%x" % (HT >> 32))
    e("s_waitcnt lgkmcnt(0)")
    c("SRDs: x s[28:31], w s[32:35]")
    e("s_mov_b32 s28, s4")
    e("s_and_b32 s29, s5, 0xffff")
    e("s_mov_b32 s30, 8192000")
    e("s_mov_b32 s31, 0x00020000")
    e("s_mov_b32 s32, s6")
    e("s_and_b32 s33, s7, 0xffff")
    e("s_mov_b32 s34, 7864320")
    e("s_mov_b32 s35, 0x00020000")
    e("s_cmp_ge_u32 s23, 4")
    e("s_cbranch_scc1 L_producer")

    c("=== consumer ===")
    stamp(0)
    c("v0 = lane; tau = lane&15 (v10), kq = lane>>4 (v11)")
    e("v_and_b32 v10, 15, v0")
    e("v_lshrrev_b32 v11, 4, v0")
    c("ws SRD s[40:43]; group s56; own slot offset s58; group base s57")
    e("s_mov_b32 s40, s18")
    e("s_and_b32 s41, s19, 0xffff")
    e("s_mov_b32 s42, 131072")
    e("s_mov_b32 s43, 0x00020000")
    e("s_lshl_b32 s56, s20, 3")
    e("s_add_u32 s56, s56, s21")
    e("s_lshl_b32 s57, s56, 13")
    e("s_lshl_b32 s59, s23, 7")
    e("s_add_u32 s57, s57, s59")
    e("s_lshl_b32 s58, s22, 9")
    e("s_add_u32 s58, s58, s57")
    c("clear own slot with the marker (lanes tau<2)")
    e("v_lshlrev_b32 v13, 5, v11")
    e("v_lshl_add_u32 v240, v10, 4, v13")
    e("v_lshl_add_u32 v241, v10, 9, v13")
    for i in range(4): e(f"v_mov_b32 v{64+i}, -1")
    e("s_mov_b32 exec_lo, 0x00030003")
    e("s_mov_b32 exec_hi, 0x00030003")
    e("buffer_store_dwordx4 v[64:67], v240, s[40:43], s58 offen sc1")
    e("s_mov_b64 exec, -1")
    c("param loads: channel = n0 + 16*w + 4*kq -> byte off")
    e("s_lshl_b32 s48, s21, 7")
    e("s_lshl_b32 s49, s23, 5")
    e("s_add_u32 s48, s48, s49")
    e("v_lshlrev_b32 v12, 3, v11")
    e("v_add_u32 v12, s48, v12")
    e("global_load_dwordx2 v[232:233], v12, s[8:9]")
    e("global_load_dwordx2 v[234:235], v12, s[10:11]")
    e("global_load_dwordx2 v[236:237], v12, s[12:13]")
    npf = 0
    PFD = 2
    for o in OPT:
        if o.startswith("-pfd"): PFD = int(o[4:])
    if not NOPF and "-pflin" in OPT:
        c("linear prefetch offsets: L = wg*32 + w*8 + lane (lane<8)")
        e("s_lshl_b32 s50, s2, 5")
        e("s_lshl_b32 s51, s23, 3")
        e("s_add_u32 s50, s50, s51")
        e("v_add_u32 v13, s50, v0")
        e("v_cmp_gt_u32 vcc, 8, v0")
        e("v_lshrrev_b32 v14, 9, v13")
        e("v_lshlrev_b32 v14, 19, v14")
        e("v_and_b32 v15, 511, v13")
        e("v_lshl_add_u32 v14, v15, 7, v14")
        e("v_lshlrev_b32 v15, 10, v13")
        e("v_mov_b32 v1, 0x7fffff00")
        e("v_cndmask_b32 v242, v1, v14, vcc")
        e("v_cndmask_b32 v243, v1, v15, vcc")
    elif not NOPF:
        c("XCD-local L2 prefetch offsets: u = (wg>>3)*4 + w")
        e("s_lshr_b32 s50, s2, 3")
        e("s_lshl_b32 s50, s50, 2")
        e("s_add_u32 s50, s50, s23")
        e("v_mov_b32 v1, 0x7fffff00")
        c("x: row = u*32 + lane (lane<32, row<4000)")
        e("s_lshl_b32 s51, s50, 5")
        e("v_add_u32 v13, s51, v0")
        e("v_cmp_gt_u32 vcc, 4000, v13")
        e("v_cmp_gt_u32 s[60:61], 32, v0")
        e("s_mul_i32 s51, s20, 4000")
        e("v_add_u32 v13, s51, v13")
        e("v_lshlrev_b32 v13, 10, v13")
        e("s_and_b64 vcc, vcc, s[60:61]")
        e("s_nop 1")
        e("v_cndmask_b32 v243, v1, v13, vcc")
        c("w: L = u*16 + lane (lane<16): tap = L>>7, row = (L>>1)&63, half = L&1")
        e("s_lshl_b32 s51, s50, 4")
        e("v_add_u32 v13, s51, v0")
        e("v_cmp_gt_u32 vcc, 16, v0")
        e("v_lshrrev_b32 v14, 7, v13")
        e("v_lshlrev_b32 v14, 19, v14")
        e("v_bfe_u32 v15, v13, 1, 6")
        e("v_lshl_add_u32 v14, v15, 10, v14")
        e("v_and_b32 v15, 1, v13")
        e("v_lshl_add_u32 v14, v15, 7, v14")
        e("s_and_b32 s51, s21, 6")
        e("s_lshl_b32 s51, s51, 7")
        e("v_add_u32 v14, s51, v14")
        e("v_cndmask_b32 v242, v1, v14, vcc")
    if not NOPF:
        e("s_mov_b32 s78, 0")
        e("s_mov_b32 s79, 0")
        for d in range(PFD - 1):
            e("s_add_u32 s78, s78, 65536")
            e("s_add_u32 s79, s79, 128")
            e("buffer_load_dword v238, v242, s[32:35], s78 offen")
            e("buffer_load_dword v239, v243, s[28:31], s79 offen")
            npf += 2
    if "-pf3" in OPT:
        c("cooperative prefetch: wave w handles stage type w lines of the XCD's w slice; x quarter rows")
        e("s_lshr_b32 s50, s2, 3")
        e("v_mov_b32 v1, 0x7fffff00")
        e("s_lshl_b32 s51, s50, 4")
        e("v_add_u32 v13, s51, v0")
        e("v_cmp_gt_u32 vcc, 16, v0")
        e("v_lshrrev_b32 v14, 6, v13")
        e("s_lshr_b32 s51, s23, 1")
        e("v_lshl_add_u32 v14, v14, 1, s51")
        e("v_lshlrev_b32 v14, 19, v14")
        e("v_bfe_u32 v15, v13, 1, 5")
        e("v_lshl_add_u32 v14, v15, 10, v14")
        e("v_and_b32 v15, 1, v13")
        e("v_lshl_add_u32 v14, v15, 7, v14")
        e("s_and_b32 s51, s23, 1")
        e("s_lshl_b32 s51, s51, 15")
        e("s_and_b32 s52, s21, 6")
        e("s_lshl_b32 s52, s52, 7")
        e("s_add_u32 s51, s51, s52")
        e("v_add_u32 v14, s51, v14")
        e("v_cndmask_b32 v242, v1, v14, vcc")
        e("s_mov_b32 s78, 0")
        e("buffer_load_dword v238, v242, s[32:35], s78 offen")
        e("s_mov_b32 s78, 65536")
        e("buffer_load_dword v238, v242, s[32:35], s78 offen")
        c("x: r = (idx*4+w)*8 + lane (lane<8, r<1000); row = b*4000 + (ntile>>1)*1000 + r")
        e("s_lshl_b32 s50, s50, 2")
        e("s_add_u32 s50, s50, s23")
        e("s_lshl_b32 s50, s50, 3")
        e("v_add_u32 v13, s50, v0")
        e("v_cmp_gt_u32 vcc, 1000, v13")
        e("v_cmp_gt_u32 s[60:61], 8, v0")
        e("s_mul_i32 s51, s20, 4000")
        e("s_lshr_b32 s52, s21, 1")
        e("s_mul_i32 s52, s52, 1000")
        e("s_add_u32 s51, s51, s52")
        e("v_add_u32 v13, s51, v13")
        e("v_lshlrev_b32 v13, 10, v13")
        e("s_and_b64 vcc, vcc, s[60:61]")
        e("s_nop 1")
        e("v_cndmask_b32 v243, v1, v13, vcc")
        e("s_mov_b32 s79, 128")
        if "-nopfx" not in OPT:
            e("buffer_load_dword v239, v243, s[28:31], s79 offen")
    if "-ppf" in OPT:
        c("partner prefetch (only when partner N-tile is class 3): first chunk's w lines of ntile^1")
        e("s_and_b32 s50, s21, 3")
        e("s_cmp_eq_u32 s50, 2")
        e("s_cbranch_scc0 L_noppf")
        e("s_and_b32 s50, s22, 7")
        e("s_lshl_b32 s50, s50, 16")
        e("s_xor_b32 s51, s21, 1")
        e("s_lshl_b32 s51, s51, 7")
        e("s_add_u32 s50, s50, s51")
        e("s_lshr_b32 s51, s22, 3")
        HALF = "-ppfh" in OPT
        for q in range(1 if HALF else 2):
            if HALF:
                e("s_lshl_b32 s52, s23, 8")
                e("s_lshl_b32 s51, s51, 1")
                e("s_add_u32 s52, s52, s51")
                e("v_lshl_add_u32 v13, v0, 2, s52")
            else:
                e(f"s_add_u32 s52, s23, {4*q}")
                e("s_lshl_b32 s52, s52, 7")
                e("s_add_u32 s52, s52, s51")
                e("v_lshl_add_u32 v13, v0, 1, s52")
            e("v_subrev_u32 v14, 512, v13")
            e("v_cmp_gt_u32 vcc, 512, v13")
            e("v_mov_b32 v1, 224")
            e("v_cmp_ge_i32 s[60:61], v14, v1")
            e("v_lshrrev_b32 v15, 8, v13")
            e("s_nop 0")
            e("v_cndmask_b32 v246, 0, 1, s[60:61]")
            e("v_cndmask_b32 v15, v246, v15, vcc")
            e("v_mul_u32_u24 v246, 224, v246")
            e("v_sub_u32 v14, v14, v246")
            e("v_and_b32 v246, 255, v13")
            e("v_cndmask_b32 v14, v14, v246, vcc")
            e("v_cndmask_b32 v246, 1, 0, vcc")
            e("v_lshrrev_b32 v247, 5, v14")
            e("v_lshl_add_u32 v246, v247, 1, v246")
            e("v_and_b32 v14, 31, v14")
            e("v_lshl_add_u32 v14, v15, 5, v14")
            e("v_lshlrev_b32 v14, 10, v14")
            e("v_lshl_add_u32 v14, v246, 19, v14")
            e("v_cmp_gt_u32 vcc, 960, v13")
            e("v_mov_b32 v1, 0x7fffff00")
            e("s_nop 0")
            e("v_cndmask_b32 v14, v1, v14, vcc")
            e("buffer_load_dword v238, v14, s[32:35], s50 offen")
        lab("L_noppf")
    c("A (x) read addresses")
    for sh in range(2):
        e(f"v_add_u32 v13, {sh}, v10")
        e("v_mul_u32_u24 v14, 3, v13")
        e("v_lshrrev_b64 v[14:15], v14, s[26:27]")
        e("v_and_b32 v14, 7, v14")
        e("v_xor_b32 v14, v14, v11")
        e("v_lshlrev_b32 v13, 7, v13")
        e("v_lshl_add_u32 v%d, v14, 4, v13" % VA[(sh,0)])
        e("v_xor_b32 v14, 4, v14")
        e("v_lshl_add_u32 v%d, v14, 4, v13" % VA[(sh,1)])
    c("B (w) read addresses")
    e("v_lshrrev_b32 v13, 2, v10")
    e("v_and_b32 v14, 3, v0")
    e("v_lshrrev_b32 v15, 1, v13")
    e("v_and_b32 v1, 1, v11")
    e("v_lshl_or_b32 v15, v1, 1, v15")
    e("v_xor_b32 v15, s23, v15")
    e("v_lshl_add_u32 v13, v11, 3, v13")
    e("v_lshlrev_b32 v13, 7, v13")
    e("v_lshl_add_u32 v13, v15, 5, v13")
    e("v_lshl_add_u32 v13, v14, 3, v13")
    for T in range(4):
        e(f"v_add_u32 v{VB[T]}, {BSLOT[T]}, v13")
    c("init acc with bias (this wait also covers the clear store)")
    e(f"s_waitcnt vmcnt({2+npf})")
    e("v_lshlrev_b32 v13, 16, v232")
    e("v_and_b32 v14, 0xffff0000, v232")
    e("v_lshlrev_b32 v15, 16, v233")
    e("v_and_b32 v1, 0xffff0000, v233")
    for j in range(8):
        e(f"v_mov_b32 v{ACC+4*j}, v13")
        e(f"v_mov_b32 v{ACC+4*j+1}, v14")
        e(f"v_mov_b32 v{ACC+4*j+2}, v15")
        e(f"v_mov_b32 v{ACC+4*j+3}, v1")
    e("s_lshl_b32 s59, s56, 2")
    e("s_add_u32 s59, s59, 128")
    e("v_mov_b32 v244, s59")
    e("s_barrier")
    stamp(1)
    for r in reads_for(0, 0): e(r)
    c("wave 0: signal 'cleared'")
    e("s_cmp_eq_u32 s23, 0")
    e("s_cbranch_scc0 L_nosig")
    e("v_mov_b32 v15, 1")
    e("s_mov_b64 exec, 1")
    e("global_atomic_add v244, v15, s[16:17] sc1")
    e("s_mov_b64 exec, -1")
    lab("L_nosig")
    e("s_mov_b32 s50, 0")
    e("s_waitcnt lgkmcnt(0)")
    e("s_barrier")
    stamp(2)
    if STAMP: e("s_memtime s[96:97]")
    lab("L_cloop")
    for T in range(4):
        s = T & 1
        Tn = (T + 1) & 3
        rd = reads_for(Tn, s ^ 1)
        pos = {}
        for k, r in enumerate(rd):
            pos.setdefault((k * 3) // 2, []).append(r)
        m = 0
        c(f"phase type {T}")
        order = [(a, j) for a in range(nT(T)) for j in range(8)]
        if "-jmajor" in OPT: order = [(a, j) for j in range(8) for a in range(nT(T))]
        for (a, j) in order:
            e(f"v_mfma_f32_16x16x32_bf16 {acc(j)}, {Bf(s,a)}, {F(s,j+a)}, {acc(j)}")
            for r in pos.get(m, []): e(r)
            if T == 0 and m == 50 and not NOPF:
                e(f"s_cmp_lt_u32 s50, {8-PFD}")
                e("s_cbranch_scc0 L_nopf")
                e("s_add_u32 s78, s78, 65536")
                e("s_add_u32 s79, s79, 128")
                e("buffer_load_dword v238, v242, s[32:35], s78 offen")
                e("buffer_load_dword v239, v243, s[28:31], s79 offen")
                lab("L_nopf")
            if m == 50 and "-pf3" in OPT:
                e(f"s_cmp_eq_u32 s23, {T}")
                e(f"s_cbranch_scc0 L_nopf3_{T}")
                e("s_cmp_lt_u32 s50, 6")
                e(f"s_cbranch_scc0 L_nopf3_{T}")
                e("s_add_u32 s78, s78, 65536")
                e("s_add_u32 s79, s79, 128")
                e("buffer_load_dword v238, v242, s[32:35], s78 offen")
                if "-nopfx" not in OPT:
                    e("buffer_load_dword v239, v243, s[28:31], s79 offen")
                lab(f"L_nopf3_{T}")
            m += 1
        if T == 3:
            e("s_add_u32 s50, s50, 1")
            e("s_cmp_lt_u32 s50, 8")
        e("s_waitcnt lgkmcnt(0)")
        e("s_barrier")
    e("s_cbranch_scc1 L_cloop")

    c("=== epilogue ===")
    stamp(3)
    if STAMP: e("s_memtime s[98:99]")
    A = lambda j,i: f"v{ACC+4*j+i}"
    S = [48,49,50,51]; M = [52,53,54,55]; Q = [56,57,58,59]; TMP = [60,61,62,63]; PUB=[64,65,66,67]
    e("global_load_dword v245, v244, s[16:17] sc1")
    e("s_lshl_b32 s51, s22, 7")
    e("s_sub_u32 s52, 1993, s51")
    e("v_lshlrev_b32 v13, 3, v10")
    e("v_sub_u32 v13, s52, v13")
    for j in range(8):
        e(f"v_cmp_lt_i32 s[{60+2*j}:{61+2*j}], {j}, v13")
    e("v_cmp_eq_u32 s[54:55], 1, v10")
    e("s_mov_b32 s53, 0x%08x" % f2u(1.0/128))
    e("s_cmp_eq_u32 s22, 15")
    e("s_cbranch_scc0 L_nomask1")
    e("s_mov_b32 s53, 0x%08x" % f2u(1.0/73))
    for j in range(8):
        for i in range(4):
            e(f"v_cndmask_b32 {A(j,i)}, 0, {A(j,i)}, s[{60+2*j}:{61+2*j}]")
    lab("L_nomask1")
    def pk(op, d, a, b, cc=None):
        if cc is None: e(f"v_pk_{op}_f32 v[{d}:{d+1}], v[{a}:{a+1}], v[{b}:{b+1}]")
        else: e(f"v_pk_{op}_f32 v[{d}:{d+1}], v[{a}:{a+1}], v[{b}:{b+1}], v[{cc}:{cc+1}]")
    AR = lambda j,i: ACC+4*j+i
    for h in (0,2): pk("add", S[h], AR(0,h), AR(1,h))
    for h in (0,2): pk("add", TMP[h], AR(2,h), AR(3,h))
    for h in (0,2): pk("add", M[h], AR(4,h), AR(5,h))
    for h in (0,2): pk("add", Q[h], AR(6,h), AR(7,h))
    for h in (0,2): pk("add", S[h], S[h], TMP[h])
    for h in (0,2): pk("add", M[h], M[h], Q[h])
    for h in (0,2): pk("add", S[h], S[h], M[h])
    e("s_nop 0")
    def allred(R):
        for sh in (8,4,2,1):
            for i in range(4):
                e(f"v_add_f32_dpp v{R[i]}, v{R[i]}, v{R[i]} row_ror:{sh} row_mask:0xf bank_mask:0xf")
    allred(S)
    for i in range(4): e(f"v_mul_f32 v{M[i]}, s53, v{S[i]}")
    e("s_cmp_eq_u32 s22, 15")
    e("s_cbranch_scc0 L_nomask2")
    for j in range(8):
        for i in range(4):
            e(f"v_cndmask_b32 {A(j,i)}, v{M[i]}, {A(j,i)}, s[{60+2*j}:{61+2*j}]")
    lab("L_nomask2")
    for j in range(8):
        for h in (0,2): e(f"v_pk_add_f32 v[{TMP[h]}:{TMP[h]+1}], v[{AR(j,h)}:{AR(j,h)+1}], v[{M[h]}:{M[h]+1}] neg_lo:[0,1] neg_hi:[0,1]")
        for h in (0,2):
            if j == 0: pk("mul", Q[h], TMP[h], TMP[h])
            else: pk("fma", Q[h], TMP[h], TMP[h], Q[h])
    e("s_nop 0")
    allred(Q)
    c("publish partials (never the marker pattern)")
    for i in range(4): e(f"v_cndmask_b32 v{PUB[i]}, v{S[i]}, v{Q[i]}, s[54:55]")
    for i in range(4): e(f"v_min_u32 v{PUB[i]}, -2, v{PUB[i]}")
    e("s_mov_b32 exec_lo, 0x00030003")
    e("s_mov_b32 exec_hi, 0x00030003")
    e(f"buffer_store_dwordx4 v[{PUB[0]}:{PUB[3]}], v240, s[40:43], s58 offen sc1")
    e("s_mov_b64 exec, -1")
    stamp(4)
    c("constants while waiting")
    e("v_cmp_eq_u32 s[54:55], 15, v10")
    e("v_mov_b32 v76, 0x43000000")
    e("v_mov_b32 v77, 0x42920000")
    e("v_mov_b32 v78, 0x%08x" % f2u(1.0/128))
    e("v_mov_b32 v79, 0x%08x" % f2u(1.0/73))
    e("v_cndmask_b32 v76, v76, v77, s[54:55]")
    e("v_cndmask_b32 v78, v78, v79, s[54:55]")
    e("s_mul_i32 s44, s20, 2040832")
    e("s_add_u32 s36, s14, s44")
    e("s_addc_u32 s37, s15, 0")
    e("s_and_b32 s37, s37, 0xffff")
    e("s_mov_b32 s38, 2040832")
    e("s_mov_b32 s39, 0x00020000")
    e("s_mov_b32 s45, 0x%08x" % f2u(1.0/1993))
    e("s_mov_b32 s46, 0x%08x" % f2u(1e-5))
    e("v_lshlrev_b32 v100, 16, v234")
    e("v_and_b32 v101, 0xffff0000, v234")
    e("v_lshlrev_b32 v102, 16, v235")
    e("v_and_b32 v103, 0xffff0000, v235")
    e("v_lshlrev_b32 v104, 16, v236")
    e("v_and_b32 v105, 0xffff0000, v236")
    e("v_lshlrev_b32 v106, 16, v237")
    e("v_and_b32 v107, 0xffff0000, v237")
    e("v_lshlrev_b32 v13, 3, v10")
    e("v_add_u32 v13, s51, v13")
    e("v_lshlrev_b32 v13, 10, v13")
    e("v_add_u32 v13, v13, v12")
    e("s_mov_b32 s47, 4096")
    k = -2.0 * math.sqrt(2.0/math.pi) * math.log2(math.e)
    e("v_mov_b32 v108, 0x%08x" % f2u(k * 0.044715))
    e("v_mov_b32 v109, 0x%08x" % f2u(k * 0.044715))
    e("v_mov_b32 v110, 0x%08x" % f2u(k))
    e("v_mov_b32 v111, 0x%08x" % f2u(k))
    e("v_mov_b32 v112, 1.0")
    e("v_mov_b32 v113, 1.0")
    e("v_mov_b32 v14, s46")
    e("s_mov_b32 s76, 0x10000")
    c("wait: all workgroups of the group have cleared their slots in this launch")
    e("s_waitcnt vmcnt(1)")
    lab("L_cpoll")
    e("v_readfirstlane_b32 s77, v245")
    e("s_cmp_ge_u32 s77, 16")
    e("s_cbranch_scc1 L_dstart")
    e("s_sub_u32 s76, s76, 1")
    e("s_cbranch_scc1 L_dstart")
    e("s_sleep 2")
    e("global_load_dword v245, v244, s[16:17] sc1")
    e("s_waitcnt vmcnt(0)")
    e("s_branch L_cpoll")
    lab("L_dstart")
    e("s_mov_b32 s76, 0x10000")
    lab("L_dpoll")
    e("buffer_load_dwordx4 v[68:71], v241, s[40:43], s57 offen sc1")
    e("buffer_load_dwordx4 v[72:75], v241, s[40:43], s57 offen offset:16 sc1")
    e("s_waitcnt vmcnt(0)")
    e("v_max3_u32 v15, v68, v69, v70")
    e("v_max3_u32 v1, v71, v72, v73")
    e("v_max3_u32 v15, v15, v74, v75")
    e("v_max_u32 v15, v15, v1")
    e("v_cmp_eq_u32 vcc, -1, v15")
    e("s_cbranch_vccz L_ddone")
    e("s_sub_u32 s76, s76, 1")
    e("s_cbranch_scc0 L_dpoll")
    lab("L_ddone")
    stamp(5)
    PS = [68,69,70,71]; PM = [72,73,74,75]
    for i in range(4): e(f"v_mov_b32 v{S[i]}, v{PS[i]}")
    allred(S)
    for i in range(4): e(f"v_mul_f32 v{M[i]}, s45, v{S[i]}")
    for i in range(4): e(f"v_fma_f32 v{TMP[i]}, v{PS[i]}, v78, -v{M[i]}")
    for i in range(4): e(f"v_mul_f32 v{TMP[i]}, v{TMP[i]}, v{TMP[i]}")
    for i in range(4): e(f"v_fma_f32 v{Q[i]}, v{TMP[i]}, v76, v{PM[i]}")
    allred(Q)
    for i in range(4): e(f"v_fma_f32 v{Q[i]}, v{Q[i]}, s45, v14")
    for i in range(4): e(f"v_rsq_f32 v{Q[i]}, v{Q[i]}")
    e("s_nop 0")
    for i in range(4): e(f"v_mul_f32 v{Q[i]}, v{Q[i]}, v{100+i}")
    for i in range(4): e(f"v_fma_f32 v{M[i]}, -v{M[i]}, v{Q[i]}, v{104+i}")
    stamp(6)
    for j0 in range(0, 8, 2):
        Zs = {}; Ps = {}
        for dj in range(2):
            Zs[dj] = 116 + 8*dj; Ps[dj] = 120 + 8*dj
        for dj in range(2):
            for h in (0,2): pk("fma", Zs[dj]+h, AR(j0+dj,h), Q[h], M[h])
        for dj in range(2):
            for h in (0,2): pk("mul", Ps[dj]+h, Zs[dj]+h, Zs[dj]+h)
        for dj in range(2):
            for h in (0,2): pk("fma", Ps[dj]+h, Ps[dj]+h, 108, 110)
        for dj in range(2):
            for h in (0,2): pk("mul", Ps[dj]+h, Ps[dj]+h, Zs[dj]+h)
        for dj in range(2):
            for i in range(4): e(f"v_exp_f32 v{Ps[dj]+i}, v{Ps[dj]+i}")
        for dj in range(2):
            for h in (0,2): pk("add", Ps[dj]+h, Ps[dj]+h, 112)
        for dj in range(2):
            for i in range(4): e(f"v_rcp_f32 v{Ps[dj]+i}, v{Ps[dj]+i}")
        for dj in range(2):
            for h in (0,2): pk("mul", Zs[dj]+h, Zs[dj]+h, Ps[dj]+h)
        for dj in range(2):
            j = j0 + dj
            o = 136 + 2*j
            e(f"v_cvt_pk_bf16_f32 v{o}, v{Zs[dj]}, v{Zs[dj]+1}")
            e(f"v_cvt_pk_bf16_f32 v{o+1}, v{Zs[dj]+2}, v{Zs[dj]+3}")
            if j < 4:
                e(f"buffer_store_dwordx2 v[{o}:{o+1}], v13, s[36:39], 0 offen offset:{j*1024}")
            else:
                e(f"buffer_store_dwordx2 v[{o}:{o+1}], v13, s[36:39], s47 offen offset:{(j-4)*1024}")
    if STAMP:
        e("s_waitcnt vmcnt(0)")
        stamp(7)
        e("s_waitcnt lgkmcnt(0)")
        e("s_cmp_eq_u32 s23, 0")
        e("s_cbranch_scc0 L_nostamp")
        for kk in range(8): e(f"v_mov_b32 v{100+kk}, s{80+2*kk}")
        e("v_mov_b32 v108, s96")
        e("v_mov_b32 v109, s98")
        e("s_getreg_b32 s60, hwreg(HW_REG_XCC_ID)")
        e("v_mov_b32 v110, s60")
        e("v_mov_b32 v111, 0")
        e("s_lshl_b32 s60, s2, 7")
        e("s_add_u32 s60, s60, 0x100000")
        e("s_mov_b32 s42, 0x200000")
        e("v_mov_b32 v14, 0")
        e("s_mov_b64 exec, 1")
        e("buffer_store_dwordx4 v[100:103], v14, s[40:43], s60 offen")
        e("buffer_store_dwordx4 v[104:107], v14, s[40:43], s60 offen offset:16")
        e("buffer_store_dwordx4 v[108:111], v14, s[40:43], s60 offen offset:32")
        if "-dbgstamp" in OPT:
            e("s_cmp_eq_u32 s2, 0")
            e("s_cselect_b32 s60, 0, 32")
            e("s_cmp_eq_u32 s2, 9")
            e("s_cselect_b32 s61, 1, 0")
            e("s_cmp_eq_u32 s2, 0")
            e("s_cselect_b32 s61, 1, s61")
            e("s_cmp_eq_u32 s61, 1")
            e("s_cbranch_scc0 L_nostamp")
            for kk in range(1, 8): e(f"v_subrev_u32 v{100+kk}, s80, v{100+kk}")
            e("v_mov_b32 v14, s60")
            e("global_store_dwordx4 v14, v[100:103], s[16:17]")
            e("global_store_dwordx4 v14, v[104:107], s[16:17] offset:16")
        lab("L_nostamp")
    e("s_endpgm")

    lab("L_producer")
    c("=== producer === pw = wave-4 (s24); g = lane>>3 (v10); pos = lane&7 (v11)")
    stamp(0)
    e("s_sub_u32 s24, s23, 4")
    e("v_lshrrev_b32 v10, 3, v0")
    e("v_and_b32 v11, 7, v0")
    e("v_and_b32 v12, 2, v10")
    e("s_and_b32 s25, s24, 1")
    e("s_lshl_b32 s25, s25, 2")
    e("v_or_b32 v12, s25, v12")
    e("v_xor_b32 v12, v12, v11")
    e("s_lshl_b32 s25, s24, 3")
    e("v_add_u32 v13, s25, v10")
    e("v_lshlrev_b32 v13, 10, v13")
    e("v_lshl_add_u32 v2, v12, 4, v13")
    e("s_lshl_b32 s25, s24, 1")
    for i in range(5):
        e(f"v_add_u32 v12, {8*i}, v10")
        e("v_cmp_le_u32 vcc, 17, v12")
        e("v_subrev_u32 v13, 17, v12")
        e("v_mov_b32 v14, s25")
        e("v_cndmask_b32 v12, v12, v13, vcc")
        e("v_addc_co_u32 v14, vcc, 0, v14, vcc")
        e("v_mul_u32_u24 v16, 3, v12")
        e("v_lshrrev_b64 v[16:17], v16, s[26:27]")
        e("v_and_b32 v16, 7, v16")
        e("v_xor_b32 v16, v16, v11")
        e("v_lshl_add_u32 v12, v12, 3, v14")
        e("v_lshlrev_b32 v12, 11, v12")
        e(f"v_lshl_add_u32 v{3+i}, v16, 4, v12")
    e("s_mul_i32 s48, s20, 4000")
    e("s_lshl_b32 s50, s22, 8")
    e("s_add_u32 s48, s48, s50")
    e("s_lshl_b32 s48, s48, 10")
    e("s_lshl_b32 s49, s21, 7")
    c("K rotation: start chunk s55; s46/s47 = un-rotated bases")
    e("s_mov_b32 s46, s48")
    e("s_mov_b32 s47, s49")
    if "-rot" in OPT:
        e("s_and_b32 s55, s22, 7")
    elif "-rot2" in OPT:
        e("s_and_b32 s55, s21, 6")
        e("s_add_u32 s55, s55, s22")
        e("s_and_b32 s55, s55, 7")
    else:
        e("s_mov_b32 s55, 0")
    e("s_lshl_b32 s54, s55, 7")
    e("s_add_u32 s48, s46, s54")
    e("s_lshl_b32 s54, s55, 16")
    e("s_add_u32 s49, s47, s54")
    e("s_lshl_b32 s52, s24, 10")
    e("s_mul_i32 s53, s24, 4352")
    def issueA(p):
        e(f"s_add_u32 s54, s48, {p*1024}")
        for i in range(5):
            e(f"s_add_u32 m0, s53, {ASLOT[p] + i*1024}")
            if i == 4: e("s_mov_b64 exec, 0xffff")
            else: e("s_nop 0")
            e(f"buffer_load_dwordx4 v{3+i}, s[28:31], s54 offen{DMAF} lds")
        e("s_mov_b64 exec, -1")
    def issueB(T):
        p, hh = T >> 1, T & 1
        for a in range(nT(T)):
            e(f"s_add_u32 m0, s52, {BSLOT[T] + a*4096}")
            e(f"s_add_u32 s54, s49, {(2*a+p)*524288 + hh*32768}")
            e(f"buffer_load_dwordx4 v2, s[32:35], s54 offen{DMAF} lds")
    stamp(1)
    issueA(0); issueB(0)
    stamp(2)
    if "-oldpro" in OPT:
        issueB(1); issueB(2); issueA(1); issueB(3)
        stamp(3)
        e("s_waitcnt vmcnt(27)")
        stamp(4)
        e("s_barrier")
        e("s_waitcnt vmcnt(19)")
        e("s_barrier")
    else:
        issueB(1)
        stamp(3)
        e("s_waitcnt vmcnt(8)")
        stamp(4)
        e("s_barrier")
        issueB(2)
        e("s_waitcnt vmcnt(7)")
        e("s_barrier")
        issueA(1); issueB(3)
    e("s_mov_b32 s50, 0")
    lab("L_ploop")
    e("s_add_u32 s55, s55, 1")
    e("s_and_b32 s55, s55, 7")
    e("s_lshl_b32 s54, s55, 7")
    e("s_add_u32 s48, s46, s54")
    e("s_lshl_b32 s54, s55, 16")
    e("s_add_u32 s49, s47, s54")
    W = [15, 21, 15, 19]
    for T in range(4):
        if T & 1: issueA(T >> 1)
        issueB(T)
        if T == 3:
            e("s_add_u32 s50, s50, 1")
            e("s_cmp_lt_u32 s50, 7")
        e(f"s_waitcnt vmcnt({W[T]})")
        e("s_barrier")
    e("s_cbranch_scc1 L_ploop")
    e("s_waitcnt vmcnt(7)")
    e("s_barrier")
    e("s_waitcnt vmcnt(0)")
    e("s_barrier")
    if STAMP:
        e("s_waitcnt lgkmcnt(0)")
        e("s_cmp_eq_u32 s23, 4")
        e("s_cbranch_scc0 L_end")
        for kk in range(5): e(f"v_mov_b32 v{100+kk}, s{80+2*kk}")
        e("s_mov_b32 s40, s18")
        e("s_and_b32 s41, s19, 0xffff")
        e("s_mov_b32 s42, 0x200000")
        e("s_mov_b32 s43, 0x00020000")
        e("s_lshl_b32 s60, s2, 7")
        e("s_add_u32 s60, s60, 0x100040")
        e("v_mov_b32 v14, 0")
        e("s_mov_b64 exec, 1")
        e("buffer_store_dwordx4 v[100:103], v14, s[40:43], s60 offen")
        e("buffer_store_dwordx4 v[104:107], v14, s[40:43], s60 offen offset:16")
    lab("L_end")
    e("s_endpgm")
    out.append('.section .rodata,"a"')
    out.append(".p2align 6")
    out.append(f".amdhsa_kernel {NAME}_kernel")
    out.append("  .amdhsa_next_free_vgpr 248")
    out.append("  .amdhsa_next_free_sgpr 102")
    out.append("  .amdhsa_accum_offset 248")
    out.append("  .amdhsa_group_segment_fixed_size 0")
    out.append("  .amdhsa_kernarg_size 64")
    out.append("  .amdhsa_user_sgpr_count 2")
    out.append("  .amdhsa_user_sgpr_kernarg_segment_ptr 1")
    out.append("  .amdhsa_system_sgpr_workgroup_id_x 1")
    out.append("  .amdhsa_float_denorm_mode_32 3")
    out.append(".end_amdhsa_kernel")
    return "\n".join(out) + "\n"

if __name__ == "__main__":
    t = gen()
    args = [a for a in sys.argv[1:] if not a.startswith("-")]
    path = args[0] if args else f"cdna_kernels/{NAME}.s"
    open(path, "w").write(t)
    print("wrote", path, len(t))
```

```python
import sys, struct, math

NAME = "standalone__self_sup_conv_stem_hubert__speech"
HEADER = """; Kernarg layout for this problem (64 bytes, ptrs only, base s[0:1]):
"""
OPT = set(a for a in sys.argv[1:] if a.startswith("-"))
STAMP = "-stamp" in OPT
NOPF = "-nopf" in OPT
OSTF = "".join(" " + f for f in ("sc0", "sc1", "nt") if "-ost" + f in OPT)
DMAF = "".join(" " + f for f in ("sc0", "sc1", "nt") if "-dma" + f in OPT)

ASLOT = [0, 17408]
BSLOT = [34816, 34816+32768, 34816+65536, 34816+65536+28672]
LDS_BYTES = BSLOT[3] + 28672
HT = 0x2f30ba77102c2

out = []
def e(s): out.append("    " + s)
def lab(s): out.append(s + ":")
def c(s): out.append("    ; " + s)
def stamp(k):
    if STAMP: e(f"s_memrealtime s[{80+2*k}:{81+2*k}]")
def f2u(x): return struct.unpack("<I", struct.pack("<f", x))[0]
def nT(T): return 8 - (T >> 1)

VA = {(0,0):2, (0,1):3, (1,0):4, (1,1):5}
VB = [6,7,8,9]
ACC = 16
FS = [48, 108]
BS = [168, 200]
def acc(j): return f"v[{ACC+4*j}:{ACC+4*j+3}]"
def F(s,t): return f"v[{FS[s]+4*t}:{FS[s]+4*t+3}]"
def Bf(s,a): return f"v[{BS[s]+4*a}:{BS[s]+4*a+3}]"

def reads_for(T, s):
    p, hh = T >> 1, T & 1
    n = nT(T)
    rA = []
    for t in range(n + 7):
        phi, sh = t & 7, t >> 3
        rA.append(f"ds_read_b128 {F(s,t)}, v{VA[(sh,hh)]} offset:{ASLOT[p] + 17*phi*128}")
    rB = []
    for a in range(n):
        b0 = BS[s] + 4*a
        rB.append([f"ds_read_b64_tr_b16 v[{b0}:{b0+1}], v{VB[T]} offset:{a*4096}",
                   f"ds_read_b64_tr_b16 v[{b0+2}:{b0+3}], v{VB[T]} offset:{a*4096+512}"])
    seq = rB[0] + rA[:8]
    for a in range(1, n):
        seq += rB[a] + [rA[7+a]]
    return seq

def spf_setup(wreg):
    e("s_lshr_b32 s64, s2, 3")
    e("s_lshl_b32 s65, s64, 4")
    e(f"s_lshl_b32 s69, {wreg}, 2")
    e("s_add_u32 s65, s65, s69")
    e("s_lshr_b32 s68, s65, 6")
    e("s_lshr_b32 s65, s65, 1")
    e("s_and_b32 s65, s65, 31")
    e("s_lshl_b32 s65, s65, 10")
    e("s_and_b32 s69, s21, 6")
    e("s_lshl_b32 s69, s69, 7")
    e("s_add_u32 s65, s65, s69")
    e("s_add_u32 s66, s6, s65")
    e("s_addc_u32 s67, s7, 0")
    e("s_lshl_b32 s68, s68, 20")
    e("s_min_u32 s69, s68, 0x600000")
    e("s_add_u32 s69, s69, 524288")
def spf_issue(T, chunk_sreg=None, chunk_imm=0):
    p, hh = T >> 1, T & 1
    e(f"s_add_u32 s70, s{69 if p else 68}, {hh*32768 + chunk_imm*65536}")
    if chunk_sreg is not None: e(f"s_add_u32 s70, s70, {chunk_sreg}")
    e("s_add_u32 s70, s66, s70")
    e("s_addc_u32 s71, s67, 0")
    for off in (0, 128, 1024, 1152):
        e(f"s_load_dword s72, s[70:71], {off}")

def ppf_block(mode):
    c("partner prefetch (only when partner N-tile is class 3): first chunk's w lines of ntile^1")
    e("s_and_b32 s60, s21, 3")
    e("s_cmp_eq_u32 s60, 2")
    e("s_cbranch_scc0 L_noppf")
    e("s_and_b32 s62, s22, 7")
    e("s_lshl_b32 s62, s62, 16")
    e("s_xor_b32 s63, s21, 1")
    e("s_lshl_b32 s63, s63, 7")
    e("s_add_u32 s62, s62, s63")
    e("s_lshr_b32 s63, s22, 3")
    for q in range(2 if mode == "all" else 1):
        if mode == "half":
            e("s_lshl_b32 s64, s23, 8")
            e("s_lshl_b32 s63, s63, 1")
            e("s_add_u32 s64, s64, s63")
            e("v_lshl_add_u32 v13, v0, 2, s64")
        elif mode == "late":
            e("s_lshl_b32 s64, s23, 7")
            e("s_add_u32 s64, s64, s63")
            e("s_add_u32 s64, s64, 512")
            e("v_lshl_add_u32 v13, v0, 1, s64")
        elif mode == "late3":
            e("s_lshl_b32 s64, s23, 7")
            e("s_add_u32 s64, s64, s63")
            e("s_add_u32 s64, s64, 448")
            e("v_lshl_add_u32 v13, v0, 1, s64")
        else:
            e(f"s_add_u32 s64, s23, {4*q}")
            e("s_lshl_b32 s64, s64, 7")
            e("s_add_u32 s64, s64, s63")
            e("v_lshl_add_u32 v13, v0, 1, s64")
        e("v_subrev_u32 v14, 512, v13")
        e("v_cmp_gt_u32 vcc, 512, v13")
        e("v_mov_b32 v1, 224")
        e("v_cmp_ge_i32 s[60:61], v14, v1")
        e("v_lshrrev_b32 v15, 8, v13")
        e("s_nop 0")
        e("v_cndmask_b32 v246, 0, 1, s[60:61]")
        e("v_cndmask_b32 v15, v246, v15, vcc")
        e("v_mul_u32_u24 v246, 224, v246")
        e("v_sub_u32 v14, v14, v246")
        e("v_and_b32 v246, 255, v13")
        e("v_cndmask_b32 v14, v14, v246, vcc")
        e("v_cndmask_b32 v246, 1, 0, vcc")
        e("v_lshrrev_b32 v247, 5, v14")
        e("v_lshl_add_u32 v246, v247, 1, v246")
        e("v_and_b32 v14, 31, v14")
        e("v_lshl_add_u32 v14, v15, 5, v14")
        e("v_lshlrev_b32 v14, 10, v14")
        e("v_lshl_add_u32 v14, v246, 19, v14")
        e("v_cmp_gt_u32 vcc, 960, v13")
        e("v_mov_b32 v1, 0x7fffff00")
        e("s_nop 0")
        e("v_cndmask_b32 v14, v1, v14, vcc")
        e("buffer_load_dword v238, v14, s[32:35], s62 offen")
    lab("L_noppf")

def gen():
    out.append(HEADER.rstrip("\n"))
    out.append(f"; @launch grid=(256,1,1) block=(512,1,1) lds={LDS_BYTES}")
    out.append('.amdgcn_target "amdgcn-amd-amdhsa--gfx950"')
    out.append(".text")
    out.append(f".globl {NAME}_kernel")
    out.append(".p2align 8")
    out.append(f".type {NAME}_kernel,@function")
    lab(f"{NAME}_kernel")
    e("s_cmp_ge_u32 s2, 256")
    e("s_cbranch_scc1 L_end")
    e("s_load_dwordx4 s[4:7], s[0:1], 0")
    e("s_load_dwordx4 s[8:11], s[0:1], 16")
    e("s_load_dwordx4 s[12:15], s[0:1], 32")
    e("s_load_dwordx4 s[16:19], s[0:1], 48")
    c("decode workgroup: xcd = wg&7, idx = wg>>3; batch = xcd>>2; ntile = (xcd&3)*2 + (idx&1); mtile = idx>>1")
    e("s_and_b32 s24, s2, 7")
    e("s_lshr_b32 s25, s2, 3")
    e("s_lshr_b32 s20, s24, 2")
    e("s_and_b32 s21, s24, 3")
    e("s_lshl_b32 s21, s21, 1")
    e("s_and_b32 s26, s25, 1")
    e("s_add_u32 s21, s21, s26")
    e("s_lshr_b32 s22, s25, 1")
    e("v_lshrrev_b32 v1, 6, v0")
    e("v_and_b32 v0, 63, v0")
    e("s_nop 0")
    e("v_readfirstlane_b32 s23, v1")
    e("s_mov_b32 s26, 0x%x" % (HT & 0xffffffff))
    e("s_mov_b32 s27, 0x%x" % (HT >> 32))
    e("s_waitcnt lgkmcnt(0)")
    c("SRDs: x s[28:31], w s[32:35]")
    e("s_mov_b32 s28, s4")
    e("s_and_b32 s29, s5, 0xffff")
    e("s_mov_b32 s30, 8192000")
    e("s_mov_b32 s31, 0x00020000")
    e("s_mov_b32 s32, s6")
    e("s_and_b32 s33, s7, 0xffff")
    e("s_mov_b32 s34, 7864320")
    e("s_mov_b32 s35, 0x00020000")
    e("s_cmp_ge_u32 s23, 4")
    e("s_cbranch_scc1 L_producer")

    c("=== consumer ===")
    stamp(0)
    c("v0 = lane; tau = lane&15 (v10), kq = lane>>4 (v11)")
    e("v_and_b32 v10, 15, v0")
    e("v_lshrrev_b32 v11, 4, v0")
    c("ws SRD s[40:43]; group s56; own slot offset s58; group base s57")
    e("s_mov_b32 s40, s18")
    e("s_and_b32 s41, s19, 0xffff")
    e("s_mov_b32 s42, 131072")
    e("s_mov_b32 s43, 0x00020000")
    e("s_lshl_b32 s56, s20, 3")
    e("s_add_u32 s56, s56, s21")
    e("s_lshl_b32 s57, s56, 13")
    e("s_lshl_b32 s59, s23, 7")
    e("s_add_u32 s57, s57, s59")
    e("s_lshl_b32 s58, s22, 9")
    e("s_add_u32 s58, s58, s57")
    c("clear own slot with the marker (lanes tau<2)")
    e("v_lshlrev_b32 v13, 5, v11")
    e("v_lshl_add_u32 v240, v10, 4, v13")
    e("v_lshl_add_u32 v241, v10, 9, v13")
    for i in range(4): e(f"v_mov_b32 v{64+i}, -1")
    e("s_mov_b32 exec_lo, 0x00030003")
    e("s_mov_b32 exec_hi, 0x00030003")
    e("buffer_store_dwordx4 v[64:67], v240, s[40:43], s58 offen sc1")
    e("s_mov_b64 exec, -1")
    c("param loads: channel = n0 + 16*w + 4*kq -> byte off")
    e("s_lshl_b32 s48, s21, 7")
    e("s_lshl_b32 s49, s23, 5")
    e("s_add_u32 s48, s48, s49")
    e("v_lshlrev_b32 v12, 3, v11")
    e("v_add_u32 v12, s48, v12")
    e("global_load_dwordx2 v[232:233], v12, s[8:9]")
    e("global_load_dwordx2 v[234:235], v12, s[10:11]")
    e("global_load_dwordx2 v[236:237], v12, s[12:13]")
    npf = 0
    PFD = 2
    for o in OPT:
        if o.startswith("-pfd"): PFD = int(o[4:])
    if not NOPF and "-pflin" in OPT:
        c("linear prefetch offsets: L = wg*32 + w*8 + lane (lane<8)")
        e("s_lshl_b32 s50, s2, 5")
        e("s_lshl_b32 s51, s23, 3")
        e("s_add_u32 s50, s50, s51")
        e("v_add_u32 v13, s50, v0")
        e("v_cmp_gt_u32 vcc, 8, v0")
        e("v_lshrrev_b32 v14, 9, v13")
        e("v_lshlrev_b32 v14, 19, v14")
        e("v_and_b32 v15, 511, v13")
        e("v_lshl_add_u32 v14, v15, 7, v14")
        e("v_lshlrev_b32 v15, 10, v13")
        e("v_mov_b32 v1, 0x7fffff00")
        e("v_cndmask_b32 v242, v1, v14, vcc")
        e("v_cndmask_b32 v243, v1, v15, vcc")
    elif not NOPF:
        c("XCD-local L2 prefetch offsets: u = (wg>>3)*4 + w")
        e("s_lshr_b32 s50, s2, 3")
        e("s_lshl_b32 s50, s50, 2")
        e("s_add_u32 s50, s50, s23")
        e("v_mov_b32 v1, 0x7fffff00")
        c("x: row = u*32 + lane (lane<32, row<4000)")
        e("s_lshl_b32 s51, s50, 5")
        e("v_add_u32 v13, s51, v0")
        e("v_cmp_gt_u32 vcc, 4000, v13")
        e("v_cmp_gt_u32 s[60:61], 32, v0")
        e("s_mul_i32 s51, s20, 4000")
        e("v_add_u32 v13, s51, v13")
        e("v_lshlrev_b32 v13, 10, v13")
        e("s_and_b64 vcc, vcc, s[60:61]")
        e("s_nop 1")
        e("v_cndmask_b32 v243, v1, v13, vcc")
        c("w: L = u*16 + lane (lane<16): tap = L>>7, row = (L>>1)&63, half = L&1")
        e("s_lshl_b32 s51, s50, 4")
        e("v_add_u32 v13, s51, v0")
        e("v_cmp_gt_u32 vcc, 16, v0")
        e("v_lshrrev_b32 v14, 7, v13")
        e("v_lshlrev_b32 v14, 19, v14")
        e("v_bfe_u32 v15, v13, 1, 6")
        e("v_lshl_add_u32 v14, v15, 10, v14")
        e("v_and_b32 v15, 1, v13")
        e("v_lshl_add_u32 v14, v15, 7, v14")
        e("s_and_b32 s51, s21, 6")
        e("s_lshl_b32 s51, s51, 7")
        e("v_add_u32 v14, s51, v14")
        e("v_cndmask_b32 v242, v1, v14, vcc")
    if not NOPF:
        e("s_mov_b32 s78, 0")
        e("s_mov_b32 s79, 0")
        for d in range(PFD - 1):
            e("s_add_u32 s78, s78, 65536")
            e("s_add_u32 s79, s79, 128")
            e("buffer_load_dword v238, v242, s[32:35], s78 offen")
            e("buffer_load_dword v239, v243, s[28:31], s79 offen")
            npf += 2
    if "-pf3" in OPT:
        c("cooperative prefetch: wave w handles stage type w lines of the XCD's w slice; x quarter rows")
        e("s_lshr_b32 s50, s2, 3")
        e("v_mov_b32 v1, 0x7fffff00")
        e("s_lshl_b32 s51, s50, 4")
        e("v_add_u32 v13, s51, v0")
        e("v_cmp_gt_u32 vcc, 16, v0")
        e("v_lshrrev_b32 v14, 6, v13")
        e("s_lshr_b32 s51, s23, 1")
        e("v_lshl_add_u32 v14, v14, 1, s51")
        e("v_lshlrev_b32 v14, 19, v14")
        e("v_bfe_u32 v15, v13, 1, 5")
        e("v_lshl_add_u32 v14, v15, 10, v14")
        e("v_and_b32 v15, 1, v13")
        e("v_lshl_add_u32 v14, v15, 7, v14")
        e("s_and_b32 s51, s23, 1")
        e("s_lshl_b32 s51, s51, 15")
        e("s_and_b32 s52, s21, 6")
        e("s_lshl_b32 s52, s52, 7")
        e("s_add_u32 s51, s51, s52")
        e("v_add_u32 v14, s51, v14")
        e("v_cndmask_b32 v242, v1, v14, vcc")
        e("s_mov_b32 s78, 0")
        e("buffer_load_dword v238, v242, s[32:35], s78 offen")
        e("s_mov_b32 s78, 65536")
        e("buffer_load_dword v238, v242, s[32:35], s78 offen")
        c("x: r = (idx*4+w)*8 + lane (lane<8, r<1000); row = b*4000 + (ntile>>1)*1000 + r")
        e("s_lshl_b32 s50, s50, 2")
        e("s_add_u32 s50, s50, s23")
        e("s_lshl_b32 s50, s50, 3")
        e("v_add_u32 v13, s50, v0")
        e("v_cmp_gt_u32 vcc, 1000, v13")
        e("v_cmp_gt_u32 s[60:61], 8, v0")
        e("s_mul_i32 s51, s20, 4000")
        e("s_lshr_b32 s52, s21, 1")
        e("s_mul_i32 s52, s52, 1000")
        e("s_add_u32 s51, s51, s52")
        e("v_add_u32 v13, s51, v13")
        e("v_lshlrev_b32 v13, 10, v13")
        e("s_and_b64 vcc, vcc, s[60:61]")
        e("s_nop 1")
        e("v_cndmask_b32 v243, v1, v13, vcc")
        e("s_mov_b32 s79, 128")
        if "-nopfx" not in OPT:
            e("buffer_load_dword v239, v243, s[28:31], s79 offen")
    if "-ppf" in OPT: ppf_block("half" if "-ppfh" in OPT else "all")
    if "-ppfe" in OPT: ppf_block("late")
    if "-spf" in OPT:
        c("initial scalar prefetch burst: all four line groups of stage type w, chunks 0 and 1")
        for g4 in range(4):
            e(f"s_mov_b32 s73, {g4}")
            spf_setup("s73")
            for T in range(4):
                e(f"s_cmp_eq_u32 s23, {T}")
                e(f"s_cbranch_scc0 L_spf0_{g4}_{T}")
                spf_issue(T, None, 0)
                lab(f"L_spf0_{g4}_{T}")
        for g4 in range(4):
            e(f"s_mov_b32 s73, {g4}")
            spf_setup("s73")
            for T in range(4):
                e(f"s_cmp_eq_u32 s23, {T}")
                e(f"s_cbranch_scc0 L_spf1_{g4}_{T}")
                spf_issue(T, None, 1)
                lab(f"L_spf1_{g4}_{T}")
    c("A (x) read addresses")
    for sh in range(2):
        e(f"v_add_u32 v13, {sh}, v10")
        e("v_mul_u32_u24 v14, 3, v13")
        e("v_lshrrev_b64 v[14:15], v14, s[26:27]")
        e("v_and_b32 v14, 7, v14")
        e("v_xor_b32 v14, v14, v11")
        e("v_lshlrev_b32 v13, 7, v13")
        e("v_lshl_add_u32 v%d, v14, 4, v13" % VA[(sh,0)])
        e("v_xor_b32 v14, 4, v14")
        e("v_lshl_add_u32 v%d, v14, 4, v13" % VA[(sh,1)])
    c("B (w) read addresses")
    e("v_lshrrev_b32 v13, 2, v10")
    e("v_and_b32 v14, 3, v0")
    e("v_lshrrev_b32 v15, 1, v13")
    e("v_and_b32 v1, 1, v11")
    e("v_lshl_or_b32 v15, v1, 1, v15")
    e("v_xor_b32 v15, s23, v15")
    e("v_lshl_add_u32 v13, v11, 3, v13")
    e("v_lshlrev_b32 v13, 7, v13")
    e("v_lshl_add_u32 v13, v15, 5, v13")
    e("v_lshl_add_u32 v13, v14, 3, v13")
    for T in range(4):
        e(f"v_add_u32 v{VB[T]}, {BSLOT[T]}, v13")
    c("init acc with bias (this wait also covers the clear store)")
    e(f"s_waitcnt vmcnt({2+npf})")
    e("v_lshlrev_b32 v13, 16, v232")
    e("v_and_b32 v14, 0xffff0000, v232")
    e("v_lshlrev_b32 v15, 16, v233")
    e("v_and_b32 v1, 0xffff0000, v233")
    for j in range(8):
        e(f"v_mov_b32 v{ACC+4*j}, v13")
        e(f"v_mov_b32 v{ACC+4*j+1}, v14")
        e(f"v_mov_b32 v{ACC+4*j+2}, v15")
        e(f"v_mov_b32 v{ACC+4*j+3}, v1")
    e("s_lshl_b32 s59, s56, 2")
    e("s_add_u32 s59, s59, 128")
    e("v_mov_b32 v244, s59")
    e("s_barrier")
    stamp(1)
    for r in reads_for(0, 0): e(r)
    if "-ppfl" in OPT: ppf_block("late")
    if "-ppfl3" in OPT: ppf_block("late3")
    c("wave 0: signal 'cleared'")
    e("s_cmp_eq_u32 s23, 0")
    e("s_cbranch_scc0 L_nosig")
    e("v_mov_b32 v15, 1")
    e("s_mov_b64 exec, 1")
    e("global_atomic_add v244, v15, s[16:17] sc1")
    e("s_mov_b64 exec, -1")
    lab("L_nosig")
    e("s_mov_b32 s50, 0")
    e("s_waitcnt lgkmcnt(0)")
    e("s_barrier")
    stamp(2)
    if STAMP: e("s_memtime s[96:97]")
    lab("L_cloop")
    for T in range(4):
        s = T & 1
        Tn = (T + 1) & 3
        rd = reads_for(Tn, s ^ 1)
        pos = {}
        for k, r in enumerate(rd):
            pos.setdefault((k * 3) // 2, []).append(r)
        m = 0
        c(f"phase type {T}")
        order = [(a, j) for a in range(nT(T)) for j in range(8)]
        if "-jmajor" in OPT: order = [(a, j) for j in range(8) for a in range(nT(T))]
        for (a, j) in order:
            e(f"v_mfma_f32_16x16x32_bf16 {acc(j)}, {Bf(s,a)}, {F(s,j+a)}, {acc(j)}")
            for r in pos.get(m, []): e(r)
            if T == 0 and m == 50 and not NOPF:
                e(f"s_cmp_lt_u32 s50, {8-PFD}")
                e("s_cbranch_scc0 L_nopf")
                e("s_add_u32 s78, s78, 65536")
                e("s_add_u32 s79, s79, 128")
                e("buffer_load_dword v238, v242, s[32:35], s78 offen")
                e("buffer_load_dword v239, v243, s[28:31], s79 offen")
                lab("L_nopf")
            if m == 50 and "-pf3" in OPT:
                e(f"s_cmp_eq_u32 s23, {T}")
                e(f"s_cbranch_scc0 L_nopf3_{T}")
                e("s_cmp_lt_u32 s50, 6")
                e(f"s_cbranch_scc0 L_nopf3_{T}")
                e("s_add_u32 s78, s78, 65536")
                e("s_add_u32 s79, s79, 128")
                e("buffer_load_dword v238, v242, s[32:35], s78 offen")
                if "-nopfx" not in OPT:
                    e("buffer_load_dword v239, v243, s[28:31], s79 offen")
                lab(f"L_nopf3_{T}")
            m += 1
        if T == 3:
            e("s_add_u32 s50, s50, 1")
            e("s_cmp_lt_u32 s50, 8")
        e("s_waitcnt lgkmcnt(0)")
        e("s_barrier")
    e("s_cbranch_scc1 L_cloop")

    c("=== epilogue ===")
    stamp(3)
    if STAMP: e("s_memtime s[98:99]")
    A = lambda j,i: f"v{ACC+4*j+i}"
    S = [48,49,50,51]; M = [52,53,54,55]; Q = [56,57,58,59]; TMP = [60,61,62,63]; PUB=[64,65,66,67]
    e("global_load_dword v245, v244, s[16:17] sc1")
    e("s_lshl_b32 s51, s22, 7")
    e("s_sub_u32 s52, 1993, s51")
    e("v_lshlrev_b32 v13, 3, v10")
    e("v_sub_u32 v13, s52, v13")
    for j in range(8):
        e(f"v_cmp_lt_i32 s[{60+2*j}:{61+2*j}], {j}, v13")
    e("v_cmp_eq_u32 s[54:55], 1, v10")
    e("s_mov_b32 s53, 0x%08x" % f2u(1.0/128))
    e("s_cmp_eq_u32 s22, 15")
    e("s_cbranch_scc0 L_nomask1")
    e("s_mov_b32 s53, 0x%08x" % f2u(1.0/73))
    for j in range(8):
        for i in range(4):
            e(f"v_cndmask_b32 {A(j,i)}, 0, {A(j,i)}, s[{60+2*j}:{61+2*j}]")
    lab("L_nomask1")
    def pk(op, d, a, b, cc=None):
        if cc is None: e(f"v_pk_{op}_f32 v[{d}:{d+1}], v[{a}:{a+1}], v[{b}:{b+1}]")
        else: e(f"v_pk_{op}_f32 v[{d}:{d+1}], v[{a}:{a+1}], v[{b}:{b+1}], v[{cc}:{cc+1}]")
    AR = lambda j,i: ACC+4*j+i
    for h in (0,2): pk("add", S[h], AR(0,h), AR(1,h))
    for h in (0,2): pk("add", TMP[h], AR(2,h), AR(3,h))
    for h in (0,2): pk("add", M[h], AR(4,h), AR(5,h))
    for h in (0,2): pk("add", Q[h], AR(6,h), AR(7,h))
    for h in (0,2): pk("add", S[h], S[h], TMP[h])
    for h in (0,2): pk("add", M[h], M[h], Q[h])
    for h in (0,2): pk("add", S[h], S[h], M[h])
    e("s_nop 0")
    def allred(R):
        for sh in (8,4,2,1):
            for i in range(4):
                e(f"v_add_f32_dpp v{R[i]}, v{R[i]}, v{R[i]} row_ror:{sh} row_mask:0xf bank_mask:0xf")
    allred(S)
    for i in range(4): e(f"v_mul_f32 v{M[i]}, s53, v{S[i]}")
    e("s_cmp_eq_u32 s22, 15")
    e("s_cbranch_scc0 L_nomask2")
    for j in range(8):
        for i in range(4):
            e(f"v_cndmask_b32 {A(j,i)}, v{M[i]}, {A(j,i)}, s[{60+2*j}:{61+2*j}]")
    lab("L_nomask2")
    for j in range(8):
        for h in (0,2): e(f"v_pk_add_f32 v[{TMP[h]}:{TMP[h]+1}], v[{AR(j,h)}:{AR(j,h)+1}], v[{M[h]}:{M[h]+1}] neg_lo:[0,1] neg_hi:[0,1]")
        for h in (0,2):
            if j == 0: pk("mul", Q[h], TMP[h], TMP[h])
            else: pk("fma", Q[h], TMP[h], TMP[h], Q[h])
    e("s_nop 0")
    allred(Q)
    c("publish partials (never the marker pattern)")
    for i in range(4): e(f"v_cndmask_b32 v{PUB[i]}, v{S[i]}, v{Q[i]}, s[54:55]")
    for i in range(4): e(f"v_min_u32 v{PUB[i]}, -2, v{PUB[i]}")
    e("s_mov_b32 exec_lo, 0x00030003")
    e("s_mov_b32 exec_hi, 0x00030003")
    e(f"buffer_store_dwordx4 v[{PUB[0]}:{PUB[3]}], v240, s[40:43], s58 offen sc1")
    e("s_mov_b64 exec, -1")
    stamp(4)
    c("constants while waiting")
    e("v_cmp_eq_u32 s[54:55], 15, v10")
    e("v_mov_b32 v76, 0x43000000")
    e("v_mov_b32 v77, 0x42920000")
    e("v_mov_b32 v78, 0x%08x" % f2u(1.0/128))
    e("v_mov_b32 v79, 0x%08x" % f2u(1.0/73))
    e("v_cndmask_b32 v76, v76, v77, s[54:55]")
    e("v_cndmask_b32 v78, v78, v79, s[54:55]")
    e("s_mul_i32 s44, s20, 2040832")
    e("s_add_u32 s36, s14, s44")
    e("s_addc_u32 s37, s15, 0")
    e("s_and_b32 s37, s37, 0xffff")
    e("s_mov_b32 s38, 2040832")
    e("s_mov_b32 s39, 0x00020000")
    e("s_mov_b32 s45, 0x%08x" % f2u(1.0/1993))
    e("s_mov_b32 s46, 0x%08x" % f2u(1e-5))
    e("v_lshlrev_b32 v100, 16, v234")
    e("v_and_b32 v101, 0xffff0000, v234")
    e("v_lshlrev_b32 v102, 16, v235")
    e("v_and_b32 v103, 0xffff0000, v235")
    e("v_lshlrev_b32 v104, 16, v236")
    e("v_and_b32 v105, 0xffff0000, v236")
    e("v_lshlrev_b32 v106, 16, v237")
    e("v_and_b32 v107, 0xffff0000, v237")
    e("v_lshlrev_b32 v13, 3, v10")
    e("v_add_u32 v13, s51, v13")
    e("v_lshlrev_b32 v13, 10, v13")
    e("v_add_u32 v13, v13, v12")
    e("s_mov_b32 s47, 4096")
    k = -2.0 * math.sqrt(2.0/math.pi) * math.log2(math.e)
    e("v_mov_b32 v108, 0x%08x" % f2u(k * 0.044715))
    e("v_mov_b32 v109, 0x%08x" % f2u(k * 0.044715))
    e("v_mov_b32 v110, 0x%08x" % f2u(k))
    e("v_mov_b32 v111, 0x%08x" % f2u(k))
    e("v_mov_b32 v112, 1.0")
    e("v_mov_b32 v113, 1.0")
    e("v_mov_b32 v14, s46")
    e("s_mov_b32 s76, 0x10000")
    c("wait: all workgroups of the group have cleared their slots in this launch")
    e("s_waitcnt vmcnt(1)")
    lab("L_cpoll")
    e("v_readfirstlane_b32 s77, v245")
    e("s_cmp_ge_u32 s77, 16")
    e("s_cbranch_scc1 L_dstart")
    e("s_sub_u32 s76, s76, 1")
    e("s_cbranch_scc1 L_dstart")
    e("s_sleep 2")
    e("global_load_dword v245, v244, s[16:17] sc1")
    e("s_waitcnt vmcnt(0)")
    e("s_branch L_cpoll")
    lab("L_dstart")
    e("s_mov_b32 s76, 0x10000")
    lab("L_dpoll")
    e("buffer_load_dwordx4 v[68:71], v241, s[40:43], s57 offen sc1")
    e("buffer_load_dwordx4 v[72:75], v241, s[40:43], s57 offen offset:16 sc1")
    e("s_waitcnt vmcnt(0)")
    e("v_max3_u32 v15, v68, v69, v70")
    e("v_max3_u32 v1, v71, v72, v73")
    e("v_max3_u32 v15, v15, v74, v75")
    e("v_max_u32 v15, v15, v1")
    e("v_cmp_eq_u32 vcc, -1, v15")
    e("s_cbranch_vccz L_ddone")
    e("s_sub_u32 s76, s76, 1")
    e("s_cbranch_scc0 L_dpoll")
    lab("L_ddone")
    stamp(5)
    PS = [68,69,70,71]; PM = [72,73,74,75]
    for i in range(4): e(f"v_mov_b32 v{S[i]}, v{PS[i]}")
    allred(S)
    for i in range(4): e(f"v_mul_f32 v{M[i]}, s45, v{S[i]}")
    for i in range(4): e(f"v_fma_f32 v{TMP[i]}, v{PS[i]}, v78, -v{M[i]}")
    for i in range(4): e(f"v_mul_f32 v{TMP[i]}, v{TMP[i]}, v{TMP[i]}")
    for i in range(4): e(f"v_fma_f32 v{Q[i]}, v{TMP[i]}, v76, v{PM[i]}")
    allred(Q)
    for i in range(4): e(f"v_fma_f32 v{Q[i]}, v{Q[i]}, s45, v14")
    for i in range(4): e(f"v_rsq_f32 v{Q[i]}, v{Q[i]}")
    e("s_nop 0")
    for i in range(4): e(f"v_mul_f32 v{Q[i]}, v{Q[i]}, v{100+i}")
    for i in range(4): e(f"v_fma_f32 v{M[i]}, -v{M[i]}, v{Q[i]}, v{104+i}")
    stamp(6)
    for j0 in range(0, 8, 2):
        Zs = {}; Ps = {}
        for dj in range(2):
            Zs[dj] = 116 + 8*dj; Ps[dj] = 120 + 8*dj
        for dj in range(2):
            for h in (0,2): pk("fma", Zs[dj]+h, AR(j0+dj,h), Q[h], M[h])
        for dj in range(2):
            for h in (0,2): pk("mul", Ps[dj]+h, Zs[dj]+h, Zs[dj]+h)
        for dj in range(2):
            for h in (0,2): pk("fma", Ps[dj]+h, Ps[dj]+h, 108, 110)
        for dj in range(2):
            for h in (0,2): pk("mul", Ps[dj]+h, Ps[dj]+h, Zs[dj]+h)
        for dj in range(2):
            for i in range(4): e(f"v_exp_f32 v{Ps[dj]+i}, v{Ps[dj]+i}")
        for dj in range(2):
            for h in (0,2): pk("add", Ps[dj]+h, Ps[dj]+h, 112)
        for dj in range(2):
            for i in range(4): e(f"v_rcp_f32 v{Ps[dj]+i}, v{Ps[dj]+i}")
        for dj in range(2):
            for h in (0,2): pk("mul", Zs[dj]+h, Zs[dj]+h, Ps[dj]+h)
        for dj in range(2):
            j = j0 + dj
            o = 136 + 2*j
            e(f"v_cvt_pk_bf16_f32 v{o}, v{Zs[dj]}, v{Zs[dj]+1}")
            e(f"v_cvt_pk_bf16_f32 v{o+1}, v{Zs[dj]+2}, v{Zs[dj]+3}")
            if j < 4:
                e(f"buffer_store_dwordx2 v[{o}:{o+1}], v13, s[36:39], 0 offen offset:{j*1024}{OSTF}")
            else:
                e(f"buffer_store_dwordx2 v[{o}:{o+1}], v13, s[36:39], s47 offen offset:{(j-4)*1024}{OSTF}")
    if STAMP:
        e("s_waitcnt vmcnt(0)")
        stamp(7)
        e("s_waitcnt lgkmcnt(0)")
        e("s_cmp_eq_u32 s23, 0")
        e("s_cbranch_scc0 L_nostamp")
        for kk in range(8): e(f"v_mov_b32 v{100+kk}, s{80+2*kk}")
        e("v_mov_b32 v108, s96")
        e("v_mov_b32 v109, s98")
        e("s_getreg_b32 s60, hwreg(HW_REG_XCC_ID)")
        e("v_mov_b32 v110, s60")
        e("v_mov_b32 v111, 0")
        e("s_lshl_b32 s60, s2, 7")
        e("s_add_u32 s60, s60, 0x100000")
        e("s_mov_b32 s42, 0x200000")
        e("v_mov_b32 v14, 0")
        e("s_mov_b64 exec, 1")
        e("buffer_store_dwordx4 v[100:103], v14, s[40:43], s60 offen")
        e("buffer_store_dwordx4 v[104:107], v14, s[40:43], s60 offen offset:16")
        e("buffer_store_dwordx4 v[108:111], v14, s[40:43], s60 offen offset:32")
        if "-dbgstamp" in OPT:
            e("s_cmp_eq_u32 s2, 0")
            e("s_cselect_b32 s60, 0, 32")
            e("s_cmp_eq_u32 s2, 9")
            e("s_cselect_b32 s61, 1, 0")
            e("s_cmp_eq_u32 s2, 0")
            e("s_cselect_b32 s61, 1, s61")
            e("s_cmp_eq_u32 s61, 1")
            e("s_cbranch_scc0 L_nostamp")
            for kk in range(1, 8): e(f"v_subrev_u32 v{100+kk}, s80, v{100+kk}")
            e("v_mov_b32 v14, s60")
            e("global_store_dwordx4 v14, v[100:103], s[16:17]")
            e("global_store_dwordx4 v14, v[104:107], s[16:17] offset:16")
        lab("L_nostamp")
    e("s_endpgm")

    lab("L_producer")
    c("=== producer === pw = wave-4 (s24); g = lane>>3 (v10); pos = lane&7 (v11)")
    stamp(0)
    e("s_sub_u32 s24, s23, 4")
    e("v_lshrrev_b32 v10, 3, v0")
    e("v_and_b32 v11, 7, v0")
    e("v_and_b32 v12, 2, v10")
    e("s_and_b32 s25, s24, 1")
    e("s_lshl_b32 s25, s25, 2")
    e("v_or_b32 v12, s25, v12")
    e("v_xor_b32 v12, v12, v11")
    e("s_lshl_b32 s25, s24, 3")
    e("v_add_u32 v13, s25, v10")
    e("v_lshlrev_b32 v13, 10, v13")
    e("v_lshl_add_u32 v2, v12, 4, v13")
    e("s_lshl_b32 s25, s24, 1")
    for i in range(5):
        e(f"v_add_u32 v12, {8*i}, v10")
        e("v_cmp_le_u32 vcc, 17, v12")
        e("v_subrev_u32 v13, 17, v12")
        e("v_mov_b32 v14, s25")
        e("v_cndmask_b32 v12, v12, v13, vcc")
        e("v_addc_co_u32 v14, vcc, 0, v14, vcc")
        e("v_mul_u32_u24 v16, 3, v12")
        e("v_lshrrev_b64 v[16:17], v16, s[26:27]")
        e("v_and_b32 v16, 7, v16")
        e("v_xor_b32 v16, v16, v11")
        e("v_lshl_add_u32 v12, v12, 3, v14")
        e("v_lshlrev_b32 v12, 11, v12")
        e(f"v_lshl_add_u32 v{3+i}, v16, 4, v12")
    e("s_mul_i32 s48, s20, 4000")
    e("s_lshl_b32 s50, s22, 8")
    e("s_add_u32 s48, s48, s50")
    e("s_lshl_b32 s48, s48, 10")
    e("s_lshl_b32 s49, s21, 7")
    c("K rotation: start chunk s55; s46/s47 = un-rotated bases")
    e("s_mov_b32 s46, s48")
    e("s_mov_b32 s47, s49")
    if "-rot" in OPT:
        e("s_and_b32 s55, s22, 7")
    elif "-rot2" in OPT:
        e("s_and_b32 s55, s21, 6")
        e("s_add_u32 s55, s55, s22")
        e("s_and_b32 s55, s55, 7")
    else:
        e("s_mov_b32 s55, 0")
    e("s_lshl_b32 s54, s55, 7")
    e("s_add_u32 s48, s46, s54")
    e("s_lshl_b32 s54, s55, 16")
    e("s_add_u32 s49, s47, s54")
    e("s_lshl_b32 s52, s24, 10")
    e("s_mul_i32 s53, s24, 4352")
    if "-spf" in OPT:
        spf_setup("s24")
        e("s_mov_b32 s74, 131072")
    def issueA(p):
        e(f"s_add_u32 s54, s48, {p*1024}")
        for i in range(5):
            e(f"s_add_u32 m0, s53, {ASLOT[p] + i*1024}")
            if i == 4: e("s_mov_b64 exec, 0xffff")
            else: e("s_nop 0")
            e(f"buffer_load_dwordx4 v{3+i}, s[28:31], s54 offen{DMAF} lds")
        e("s_mov_b64 exec, -1")
    def issueB(T):
        p, hh = T >> 1, T & 1
        for a in range(nT(T)):
            e(f"s_add_u32 m0, s52, {BSLOT[T] + a*4096}")
            e(f"s_add_u32 s54, s49, {(2*a+p)*524288 + hh*32768}")
            e(f"buffer_load_dwordx4 v2, s[32:35], s54 offen{DMAF} lds")
    stamp(1)
    issueA(0); issueB(0)
    stamp(2)
    if "-oldpro" in OPT:
        issueB(1); issueB(2); issueA(1); issueB(3)
        stamp(3)
        e("s_waitcnt vmcnt(27)")
        stamp(4)
        e("s_barrier")
        e("s_waitcnt vmcnt(19)")
        e("s_barrier")
    else:
        issueB(1)
        stamp(3)
        e("s_waitcnt vmcnt(8)")
        stamp(4)
        e("s_barrier")
        issueB(2)
        e("s_waitcnt vmcnt(7)")
        e("s_barrier")
        issueA(1); issueB(3)
    e("s_mov_b32 s50, 0")
    lab("L_ploop")
    e("s_add_u32 s55, s55, 1")
    e("s_and_b32 s55, s55, 7")
    e("s_lshl_b32 s54, s55, 7")
    e("s_add_u32 s48, s46, s54")
    e("s_lshl_b32 s54, s55, 16")
    e("s_add_u32 s49, s47, s54")
    W = [15, 21, 15, 19]
    for T in range(4):
        if T & 1: issueA(T >> 1)
        issueB(T)
        if "-spf" in OPT:
            e("s_cmp_lt_u32 s50, 6")
            e(f"s_cbranch_scc0 L_nospf_{T}")
            spf_issue(T, "s74")
            lab(f"L_nospf_{T}")
            if T == 3: e("s_add_u32 s74, s74, 65536")
        if T == 3:
            e("s_add_u32 s50, s50, 1")
            e("s_cmp_lt_u32 s50, 7")
        e(f"s_waitcnt vmcnt({W[T]})")
        e("s_barrier")
    e("s_cbranch_scc1 L_ploop")
    e("s_waitcnt vmcnt(7)")
    e("s_barrier")
    e("s_waitcnt vmcnt(0)")
    e("s_barrier")
    if STAMP:
        e("s_waitcnt lgkmcnt(0)")
        e("s_cmp_eq_u32 s23, 4")
        e("s_cbranch_scc0 L_end")
        for kk in range(5): e(f"v_mov_b32 v{100+kk}, s{80+2*kk}")
        e("s_mov_b32 s40, s18")
        e("s_and_b32 s41, s19, 0xffff")
        e("s_mov_b32 s42, 0x200000")
        e("s_mov_b32 s43, 0x00020000")
        e("s_lshl_b32 s60, s2, 7")
        e("s_add_u32 s60, s60, 0x100040")
        e("v_mov_b32 v14, 0")
        e("s_mov_b64 exec, 1")
        e("buffer_store_dwordx4 v[100:103], v14, s[40:43], s60 offen")
        e("buffer_store_dwordx4 v[104:107], v14, s[40:43], s60 offen offset:16")
    lab("L_end")
    e("s_endpgm")
    out.append('.section .rodata,"a"')
    out.append(".p2align 6")
    out.append(f".amdhsa_kernel {NAME}_kernel")
    out.append("  .amdhsa_next_free_vgpr 248")
    out.append("  .amdhsa_next_free_sgpr 102")
    out.append("  .amdhsa_accum_offset 248")
    out.append("  .amdhsa_group_segment_fixed_size 0")
    out.append("  .amdhsa_kernarg_size 64")
    out.append("  .amdhsa_user_sgpr_count 2")
    out.append("  .amdhsa_user_sgpr_kernarg_segment_ptr 1")
    out.append("  .amdhsa_system_sgpr_workgroup_id_x 1")
    out.append("  .amdhsa_float_denorm_mode_32 3")
    out.append(".end_amdhsa_kernel")
    return "\n".join(out) + "\n"

if __name__ == "__main__":
    t = gen()
    args = [a for a in sys.argv[1:] if not a.startswith("-")]
    path = args[0] if args else f"cdna_kernels/{NAME}.s"
    open(path, "w").write(t)
    print("wrote", path, len(t))
```

```python
import sys, struct, math

NAME = "standalone__self_sup_conv_stem_hubert__speech"
HEADER = """; Kernarg layout for this problem (64 bytes, ptrs only, base s[0:1]):
"""
OPT = set(a for a in sys.argv[1:] if a.startswith("-"))
STAMP = "-stamp" in OPT
NOPF = "-nopf" in OPT
OSTF = "".join(" " + f for f in ("sc0", "sc1", "nt") if "-ost" + f in OPT)
DMAF = "".join(" " + f for f in ("sc0", "sc1", "nt") if "-dma" + f in OPT)

ASLOT = [0, 17408]
BSLOT = [34816, 34816+32768, 34816+65536, 34816+65536+28672]
LDS_BYTES = BSLOT[3] + 28672
HT = 0x2f30ba77102c2

out = []
def e(s): out.append("    " + s)
def lab(s): out.append(s + ":")
def c(s): out.append("    ; " + s)
def stamp(k):
    if STAMP: e(f"s_memrealtime s[{80+2*k}:{81+2*k}]")
def f2u(x): return struct.unpack("<I", struct.pack("<f", x))[0]
def nT(T): return 8 - (T >> 1)

VA = {(0,0):2, (0,1):3, (1,0):4, (1,1):5}
VB = [6,7,8,9]
ACC = 16
FS = [48, 108]
BS = [168, 200]
def acc(j): return f"v[{ACC+4*j}:{ACC+4*j+3}]"
def F(s,t): return f"v[{FS[s]+4*t}:{FS[s]+4*t+3}]"
def Bf(s,a): return f"v[{BS[s]+4*a}:{BS[s]+4*a+3}]"

def reads_for(T, s):
    p, hh = T >> 1, T & 1
    n = nT(T)
    rA = []
    for t in range(n + 7):
        phi, sh = t & 7, t >> 3
        rA.append(f"ds_read_b128 {F(s,t)}, v{VA[(sh,hh)]} offset:{ASLOT[p] + 17*phi*128}")
    rB = []
    for a in range(n):
        b0 = BS[s] + 4*a
        rB.append([f"ds_read_b64_tr_b16 v[{b0}:{b0+1}], v{VB[T]} offset:{a*4096}",
                   f"ds_read_b64_tr_b16 v[{b0+2}:{b0+3}], v{VB[T]} offset:{a*4096+512}"])
    seq = rB[0] + rA[:8]
    for a in range(1, n):
        seq += rB[a] + [rA[7+a]]
    return seq

def spf_setup(wreg):
    e("s_lshr_b32 s64, s2, 3")
    e("s_lshl_b32 s65, s64, 4")
    e(f"s_lshl_b32 s69, {wreg}, 2")
    e("s_add_u32 s65, s65, s69")
    e("s_lshr_b32 s68, s65, 6")
    e("s_lshr_b32 s65, s65, 1")
    e("s_and_b32 s65, s65, 31")
    e("s_lshl_b32 s65, s65, 10")
    e("s_and_b32 s69, s21, 6")
    e("s_lshl_b32 s69, s69, 7")
    e("s_add_u32 s65, s65, s69")
    e("s_add_u32 s66, s6, s65")
    e("s_addc_u32 s67, s7, 0")
    e("s_lshl_b32 s68, s68, 20")
    e("s_min_u32 s69, s68, 0x600000")
    e("s_add_u32 s69, s69, 524288")
def spf_issue(T, chunk_sreg=None, chunk_imm=0):
    p, hh = T >> 1, T & 1
    e(f"s_add_u32 s70, s{69 if p else 68}, {hh*32768 + chunk_imm*65536}")
    if chunk_sreg is not None: e(f"s_add_u32 s70, s70, {chunk_sreg}")
    e("s_add_u32 s70, s66, s70")
    e("s_addc_u32 s71, s67, 0")
    for off in (0, 128, 1024, 1152):
        e(f"s_load_dword s72, s[70:71], {off}")

def ppf_block(mode):
    c("partner prefetch (only when partner N-tile is class 3): first chunk's w lines of ntile^1")
    e("s_and_b32 s60, s21, 3")
    e("s_cmp_eq_u32 s60, 2")
    e("s_cbranch_scc0 L_noppf")
    e("s_and_b32 s62, s22, 7")
    e("s_lshl_b32 s62, s62, 16")
    e("s_xor_b32 s63, s21, 1")
    e("s_lshl_b32 s63, s63, 7")
    e("s_add_u32 s62, s62, s63")
    e("s_lshr_b32 s63, s22, 3")
    for q in range(2 if mode == "all" else 1):
        if mode == "half":
            e("s_lshl_b32 s64, s23, 8")
            e("s_lshl_b32 s63, s63, 1")
            e("s_add_u32 s64, s64, s63")
            e("v_lshl_add_u32 v13, v0, 2, s64")
        elif mode == "late":
            e("s_lshl_b32 s64, s23, 7")
            e("s_add_u32 s64, s64, s63")
            e("s_add_u32 s64, s64, 512")
            e("v_lshl_add_u32 v13, v0, 1, s64")
        elif mode == "late3":
            e("s_lshl_b32 s64, s23, 7")
            e("s_add_u32 s64, s64, s63")
            e("s_add_u32 s64, s64, 448")
            e("v_lshl_add_u32 v13, v0, 1, s64")
        else:
            e(f"s_add_u32 s64, s23, {4*q}")
            e("s_lshl_b32 s64, s64, 7")
            e("s_add_u32 s64, s64, s63")
            e("v_lshl_add_u32 v13, v0, 1, s64")
        e("v_subrev_u32 v14, 512, v13")
        e("v_cmp_gt_u32 vcc, 512, v13")
        e("v_mov_b32 v1, 224")
        e("v_cmp_ge_i32 s[60:61], v14, v1")
        e("v_lshrrev_b32 v15, 8, v13")
        e("s_nop 0")
        e("v_cndmask_b32 v246, 0, 1, s[60:61]")
        e("v_cndmask_b32 v15, v246, v15, vcc")
        e("v_mul_u32_u24 v246, 224, v246")
        e("v_sub_u32 v14, v14, v246")
        e("v_and_b32 v246, 255, v13")
        e("v_cndmask_b32 v14, v14, v246, vcc")
        e("v_cndmask_b32 v246, 1, 0, vcc")
        e("v_lshrrev_b32 v247, 5, v14")
        e("v_lshl_add_u32 v246, v247, 1, v246")
        e("v_and_b32 v14, 31, v14")
        e("v_lshl_add_u32 v14, v15, 5, v14")
        e("v_lshlrev_b32 v14, 10, v14")
        e("v_lshl_add_u32 v14, v246, 19, v14")
        e("v_cmp_gt_u32 vcc, 960, v13")
        e("v_mov_b32 v1, 0x7fffff00")
        e("s_nop 0")
        e("v_cndmask_b32 v14, v1, v14, vcc")
        e("buffer_load_dword v238, v14, s[32:35], s62 offen")
    lab("L_noppf")

def gen():
    out.append(HEADER.rstrip("\n"))
    out.append(f"; @launch grid=(256,1,1) block=(512,1,1) lds={LDS_BYTES}")
    out.append('.amdgcn_target "amdgcn-amd-amdhsa--gfx950"')
    out.append(".text")
    out.append(f".globl {NAME}_kernel")
    out.append(".p2align 8")
    out.append(f".type {NAME}_kernel,@function")
    lab(f"{NAME}_kernel")
    e("s_cmp_ge_u32 s2, 256")
    e("s_cbranch_scc1 L_end")
    e("s_load_dwordx4 s[4:7], s[0:1], 0")
    e("s_load_dwordx4 s[8:11], s[0:1], 16")
    e("s_load_dwordx4 s[12:15], s[0:1], 32")
    e("s_load_dwordx4 s[16:19], s[0:1], 48")
    c("decode workgroup: xcd = wg&7, idx = wg>>3; batch = xcd>>2; ntile = (xcd&3)*2 + (idx&1); mtile = idx>>1")
    e("s_and_b32 s24, s2, 7")
    e("s_lshr_b32 s25, s2, 3")
    e("s_lshr_b32 s20, s24, 2")
    e("s_and_b32 s21, s24, 3")
    e("s_lshl_b32 s21, s21, 1")
    e("s_and_b32 s26, s25, 1")
    e("s_add_u32 s21, s21, s26")
    e("s_lshr_b32 s22, s25, 1")
    e("v_lshrrev_b32 v1, 6, v0")
    e("v_and_b32 v0, 63, v0")
    e("s_nop 0")
    e("v_readfirstlane_b32 s23, v1")
    e("s_mov_b32 s26, 0x%x" % (HT & 0xffffffff))
    e("s_mov_b32 s27, 0x%x" % (HT >> 32))
    e("s_waitcnt lgkmcnt(0)")
    c("SRDs: x s[28:31], w s[32:35]")
    e("s_mov_b32 s28, s4")
    e("s_and_b32 s29, s5, 0xffff")
    e("s_mov_b32 s30, 8192000")
    e("s_mov_b32 s31, 0x00020000")
    e("s_mov_b32 s32, s6")
    e("s_and_b32 s33, s7, 0xffff")
    e("s_mov_b32 s34, 7864320")
    e("s_mov_b32 s35, 0x00020000")
    e("s_cmp_ge_u32 s23, 4")
    e("s_cbranch_scc1 L_producer")

    c("=== consumer ===")
    if "-cprio" in OPT: e("s_setprio 3")
    stamp(0)
    c("v0 = lane; tau = lane&15 (v10), kq = lane>>4 (v11)")
    e("v_and_b32 v10, 15, v0")
    e("v_lshrrev_b32 v11, 4, v0")
    c("ws SRD s[40:43]; group s56; own slot offset s58; group base s57")
    e("s_mov_b32 s40, s18")
    e("s_and_b32 s41, s19, 0xffff")
    e("s_mov_b32 s42, 131072")
    e("s_mov_b32 s43, 0x00020000")
    e("s_lshl_b32 s56, s20, 3")
    e("s_add_u32 s56, s56, s21")
    e("s_lshl_b32 s57, s56, 13")
    e("s_lshl_b32 s59, s23, 7")
    e("s_add_u32 s57, s57, s59")
    e("s_lshl_b32 s58, s22, 9")
    e("s_add_u32 s58, s58, s57")
    c("clear own slot with the marker (lanes tau<2)")
    e("v_lshlrev_b32 v13, 5, v11")
    e("v_lshl_add_u32 v240, v10, 4, v13")
    e("v_lshl_add_u32 v241, v10, 9, v13")
    for i in range(4): e(f"v_mov_b32 v{64+i}, -1")
    e("s_mov_b32 exec_lo, 0x00030003")
    e("s_mov_b32 exec_hi, 0x00030003")
    e("buffer_store_dwordx4 v[64:67], v240, s[40:43], s58 offen sc1")
    e("s_mov_b64 exec, -1")
    c("param loads: channel = n0 + 16*w + 4*kq -> byte off")
    e("s_lshl_b32 s48, s21, 7")
    e("s_lshl_b32 s49, s23, 5")
    e("s_add_u32 s48, s48, s49")
    e("v_lshlrev_b32 v12, 3, v11")
    e("v_add_u32 v12, s48, v12")
    e("global_load_dwordx2 v[232:233], v12, s[8:9]")
    e("global_load_dwordx2 v[234:235], v12, s[10:11]")
    e("global_load_dwordx2 v[236:237], v12, s[12:13]")
    npf = 0
    PFD = 2
    for o in OPT:
        if o.startswith("-pfd"): PFD = int(o[4:])
    if not NOPF and "-pflin" in OPT:
        c("linear prefetch offsets: L = wg*32 + w*8 + lane (lane<8)")
        e("s_lshl_b32 s50, s2, 5")
        e("s_lshl_b32 s51, s23, 3")
        e("s_add_u32 s50, s50, s51")
        e("v_add_u32 v13, s50, v0")
        e("v_cmp_gt_u32 vcc, 8, v0")
        e("v_lshrrev_b32 v14, 9, v13")
        e("v_lshlrev_b32 v14, 19, v14")
        e("v_and_b32 v15, 511, v13")
        e("v_lshl_add_u32 v14, v15, 7, v14")
        e("v_lshlrev_b32 v15, 10, v13")
        e("v_mov_b32 v1, 0x7fffff00")
        e("v_cndmask_b32 v242, v1, v14, vcc")
        e("v_cndmask_b32 v243, v1, v15, vcc")
    elif not NOPF:
        c("XCD-local L2 prefetch offsets: u = (wg>>3)*4 + w")
        e("s_lshr_b32 s50, s2, 3")
        e("s_lshl_b32 s50, s50, 2")
        e("s_add_u32 s50, s50, s23")
        e("v_mov_b32 v1, 0x7fffff00")
        c("x: row = u*32 + lane (lane<32, row<4000)")
        e("s_lshl_b32 s51, s50, 5")
        e("v_add_u32 v13, s51, v0")
        e("v_cmp_gt_u32 vcc, 4000, v13")
        e("v_cmp_gt_u32 s[60:61], 32, v0")
        e("s_mul_i32 s51, s20, 4000")
        e("v_add_u32 v13, s51, v13")
        e("v_lshlrev_b32 v13, 10, v13")
        e("s_and_b64 vcc, vcc, s[60:61]")
        e("s_nop 1")
        e("v_cndmask_b32 v243, v1, v13, vcc")
        c("w: L = u*16 + lane (lane<16): tap = L>>7, row = (L>>1)&63, half = L&1")
        e("s_lshl_b32 s51, s50, 4")
        e("v_add_u32 v13, s51, v0")
        e("v_cmp_gt_u32 vcc, 16, v0")
        e("v_lshrrev_b32 v14, 7, v13")
        e("v_lshlrev_b32 v14, 19, v14")
        e("v_bfe_u32 v15, v13, 1, 6")
        e("v_lshl_add_u32 v14, v15, 10, v14")
        e("v_and_b32 v15, 1, v13")
        e("v_lshl_add_u32 v14, v15, 7, v14")
        e("s_and_b32 s51, s21, 6")
        e("s_lshl_b32 s51, s51, 7")
        e("v_add_u32 v14, s51, v14")
        e("v_cndmask_b32 v242, v1, v14, vcc")
    if not NOPF:
        e("s_mov_b32 s78, 0")
        e("s_mov_b32 s79, 0")
        for d in range(PFD - 1):
            e("s_add_u32 s78, s78, 65536")
            e("s_add_u32 s79, s79, 128")
            e("buffer_load_dword v238, v242, s[32:35], s78 offen")
            e("buffer_load_dword v239, v243, s[28:31], s79 offen")
            npf += 2
    if "-pf3" in OPT:
        c("cooperative prefetch: wave w handles stage type w lines of the XCD's w slice; x quarter rows")
        e("s_lshr_b32 s50, s2, 3")
        e("v_mov_b32 v1, 0x7fffff00")
        e("s_lshl_b32 s51, s50, 4")
        e("v_add_u32 v13, s51, v0")
        e("v_cmp_gt_u32 vcc, 16, v0")
        e("v_lshrrev_b32 v14, 6, v13")
        e("s_lshr_b32 s51, s23, 1")
        e("v_lshl_add_u32 v14, v14, 1, s51")
        e("v_lshlrev_b32 v14, 19, v14")
        e("v_bfe_u32 v15, v13, 1, 5")
        e("v_lshl_add_u32 v14, v15, 10, v14")
        e("v_and_b32 v15, 1, v13")
        e("v_lshl_add_u32 v14, v15, 7, v14")
        e("s_and_b32 s51, s23, 1")
        e("s_lshl_b32 s51, s51, 15")
        e("s_and_b32 s52, s21, 6")
        e("s_lshl_b32 s52, s52, 7")
        e("s_add_u32 s51, s51, s52")
        e("v_add_u32 v14, s51, v14")
        e("v_cndmask_b32 v242, v1, v14, vcc")
        e("s_mov_b32 s78, 0")
        e("buffer_load_dword v238, v242, s[32:35], s78 offen")
        e("s_mov_b32 s78, 65536")
        e("buffer_load_dword v238, v242, s[32:35], s78 offen")
        c("x: r = (idx*4+w)*8 + lane (lane<8, r<1000); row = b*4000 + (ntile>>1)*1000 + r")
        e("s_lshl_b32 s50, s50, 2")
        e("s_add_u32 s50, s50, s23")
        e("s_lshl_b32 s50, s50, 3")
        e("v_add_u32 v13, s50, v0")
        e("v_cmp_gt_u32 vcc, 1000, v13")
        e("v_cmp_gt_u32 s[60:61], 8, v0")
        e("s_mul_i32 s51, s20, 4000")
        e("s_lshr_b32 s52, s21, 1")
        e("s_mul_i32 s52, s52, 1000")
        e("s_add_u32 s51, s51, s52")
        e("v_add_u32 v13, s51, v13")
        e("v_lshlrev_b32 v13, 10, v13")
        e("s_and_b64 vcc, vcc, s[60:61]")
        e("s_nop 1")
        e("v_cndmask_b32 v243, v1, v13, vcc")
        e("s_mov_b32 s79, 128")
        if "-nopfx" not in OPT:
            e("buffer_load_dword v239, v243, s[28:31], s79 offen")
    if "-ppf" in OPT: ppf_block("half" if "-ppfh" in OPT else "all")
    if "-ppfe" in OPT: ppf_block("late")
    if "-spf" in OPT:
        c("initial scalar prefetch burst: all four line groups of stage type w, chunks 0 and 1")
        for g4 in range(4):
            e(f"s_mov_b32 s73, {g4}")
            spf_setup("s73")
            for T in range(4):
                e(f"s_cmp_eq_u32 s23, {T}")
                e(f"s_cbranch_scc0 L_spf0_{g4}_{T}")
                spf_issue(T, None, 0)
                lab(f"L_spf0_{g4}_{T}")
        for g4 in range(4):
            e(f"s_mov_b32 s73, {g4}")
            spf_setup("s73")
            for T in range(4):
                e(f"s_cmp_eq_u32 s23, {T}")
                e(f"s_cbranch_scc0 L_spf1_{g4}_{T}")
                spf_issue(T, None, 1)
                lab(f"L_spf1_{g4}_{T}")
    c("A (x) read addresses")
    for sh in range(2):
        e(f"v_add_u32 v13, {sh}, v10")
        e("v_mul_u32_u24 v14, 3, v13")
        e("v_lshrrev_b64 v[14:15], v14, s[26:27]")
        e("v_and_b32 v14, 7, v14")
        e("v_xor_b32 v14, v14, v11")
        e("v_lshlrev_b32 v13, 7, v13")
        e("v_lshl_add_u32 v%d, v14, 4, v13" % VA[(sh,0)])
        e("v_xor_b32 v14, 4, v14")
        e("v_lshl_add_u32 v%d, v14, 4, v13" % VA[(sh,1)])
    c("B (w) read addresses")
    e("v_lshrrev_b32 v13, 2, v10")
    e("v_and_b32 v14, 3, v0")
    e("v_lshrrev_b32 v15, 1, v13")
    e("v_and_b32 v1, 1, v11")
    e("v_lshl_or_b32 v15, v1, 1, v15")
    e("v_xor_b32 v15, s23, v15")
    e("v_lshl_add_u32 v13, v11, 3, v13")
    e("v_lshlrev_b32 v13, 7, v13")
    e("v_lshl_add_u32 v13, v15, 5, v13")
    e("v_lshl_add_u32 v13, v14, 3, v13")
    for T in range(4):
        e(f"v_add_u32 v{VB[T]}, {BSLOT[T]}, v13")
    c("init acc with bias (this wait also covers the clear store)")
    e(f"s_waitcnt vmcnt({2+npf})")
    e("v_lshlrev_b32 v13, 16, v232")
    e("v_and_b32 v14, 0xffff0000, v232")
    e("v_lshlrev_b32 v15, 16, v233")
    e("v_and_b32 v1, 0xffff0000, v233")
    for j in range(8):
        e(f"v_mov_b32 v{ACC+4*j}, v13")
        e(f"v_mov_b32 v{ACC+4*j+1}, v14")
        e(f"v_mov_b32 v{ACC+4*j+2}, v15")
        e(f"v_mov_b32 v{ACC+4*j+3}, v1")
    e("s_lshl_b32 s59, s56, 2")
    e("s_add_u32 s59, s59, 128")
    e("v_mov_b32 v244, s59")
    e("s_barrier")
    stamp(1)
    for r in reads_for(0, 0): e(r)
    if "-ppfl" in OPT: ppf_block("late")
    if "-ppfl3" in OPT: ppf_block("late3")
    c("wave 0: signal 'cleared'")
    e("s_cmp_eq_u32 s23, 0")
    e("s_cbranch_scc0 L_nosig")
    e("v_mov_b32 v15, 1")
    e("s_mov_b64 exec, 1")
    e("global_atomic_add v244, v15, s[16:17] sc1")
    e("s_mov_b64 exec, -1")
    lab("L_nosig")
    e("s_mov_b32 s50, 0")
    e("s_waitcnt lgkmcnt(0)")
    e("s_barrier")
    stamp(2)
    if STAMP: e("s_memtime s[96:97]")
    lab("L_cloop")
    for T in range(4):
        s = T & 1
        Tn = (T + 1) & 3
        rd = reads_for(Tn, s ^ 1)
        pos = {}
        for k, r in enumerate(rd):
            pos.setdefault((k * 3) // 2, []).append(r)
        m = 0
        c(f"phase type {T}")
        order = [(a, j) for a in range(nT(T)) for j in range(8)]
        if "-jmajor" in OPT: order = [(a, j) for j in range(8) for a in range(nT(T))]
        for (a, j) in order:
            e(f"v_mfma_f32_16x16x32_bf16 {acc(j)}, {Bf(s,a)}, {F(s,j+a)}, {acc(j)}")
            for r in pos.get(m, []): e(r)
            if T == 0 and m == 50 and not NOPF:
                e(f"s_cmp_lt_u32 s50, {8-PFD}")
                e("s_cbranch_scc0 L_nopf")
                e("s_add_u32 s78, s78, 65536")
                e("s_add_u32 s79, s79, 128")
                e("buffer_load_dword v238, v242, s[32:35], s78 offen")
                e("buffer_load_dword v239, v243, s[28:31], s79 offen")
                lab("L_nopf")
            if m == 50 and "-pf3" in OPT:
                e(f"s_cmp_eq_u32 s23, {T}")
                e(f"s_cbranch_scc0 L_nopf3_{T}")
                e("s_cmp_lt_u32 s50, 6")
                e(f"s_cbranch_scc0 L_nopf3_{T}")
                e("s_add_u32 s78, s78, 65536")
                e("s_add_u32 s79, s79, 128")
                e("buffer_load_dword v238, v242, s[32:35], s78 offen")
                if "-nopfx" not in OPT:
                    e("buffer_load_dword v239, v243, s[28:31], s79 offen")
                lab(f"L_nopf3_{T}")
            m += 1
        if T == 3:
            e("s_add_u32 s50, s50, 1")
            e("s_cmp_lt_u32 s50, 8")
        e("s_waitcnt lgkmcnt(0)")
        e("s_barrier")
    e("s_cbranch_scc1 L_cloop")

    c("=== epilogue ===")
    stamp(3)
    if STAMP: e("s_memtime s[98:99]")
    A = lambda j,i: f"v{ACC+4*j+i}"
    S = [48,49,50,51]; M = [52,53,54,55]; Q = [56,57,58,59]; TMP = [60,61,62,63]; PUB=[64,65,66,67]
    e("global_load_dword v245, v244, s[16:17] sc1")
    e("s_lshl_b32 s51, s22, 7")
    e("s_sub_u32 s52, 1993, s51")
    e("v_lshlrev_b32 v13, 3, v10")
    e("v_sub_u32 v13, s52, v13")
    for j in range(8):
        e(f"v_cmp_lt_i32 s[{60+2*j}:{61+2*j}], {j}, v13")
    e("v_cmp_eq_u32 s[54:55], 1, v10")
    e("s_mov_b32 s53, 0x%08x" % f2u(1.0/128))
    e("s_cmp_eq_u32 s22, 15")
    e("s_cbranch_scc0 L_nomask1")
    e("s_mov_b32 s53, 0x%08x" % f2u(1.0/73))
    for j in range(8):
        for i in range(4):
            e(f"v_cndmask_b32 {A(j,i)}, 0, {A(j,i)}, s[{60+2*j}:{61+2*j}]")
    lab("L_nomask1")
    def pk(op, d, a, b, cc=None):
        if cc is None: e(f"v_pk_{op}_f32 v[{d}:{d+1}], v[{a}:{a+1}], v[{b}:{b+1}]")
        else: e(f"v_pk_{op}_f32 v[{d}:{d+1}], v[{a}:{a+1}], v[{b}:{b+1}], v[{cc}:{cc+1}]")
    AR = lambda j,i: ACC+4*j+i
    for h in (0,2): pk("add", S[h], AR(0,h), AR(1,h))
    for h in (0,2): pk("add", TMP[h], AR(2,h), AR(3,h))
    for h in (0,2): pk("add", M[h], AR(4,h), AR(5,h))
    for h in (0,2): pk("add", Q[h], AR(6,h), AR(7,h))
    for h in (0,2): pk("add", S[h], S[h], TMP[h])
    for h in (0,2): pk("add", M[h], M[h], Q[h])
    for h in (0,2): pk("add", S[h], S[h], M[h])
    e("s_nop 0")
    def allred(R):
        for sh in (8,4,2,1):
            for i in range(4):
                e(f"v_add_f32_dpp v{R[i]}, v{R[i]}, v{R[i]} row_ror:{sh} row_mask:0xf bank_mask:0xf")
    allred(S)
    for i in range(4): e(f"v_mul_f32 v{M[i]}, s53, v{S[i]}")
    e("s_cmp_eq_u32 s22, 15")
    e("s_cbranch_scc0 L_nomask2")
    for j in range(8):
        for i in range(4):
            e(f"v_cndmask_b32 {A(j,i)}, v{M[i]}, {A(j,i)}, s[{60+2*j}:{61+2*j}]")
    lab("L_nomask2")
    for j in range(8):
        for h in (0,2): e(f"v_pk_add_f32 v[{TMP[h]}:{TMP[h]+1}], v[{AR(j,h)}:{AR(j,h)+1}], v[{M[h]}:{M[h]+1}] neg_lo:[0,1] neg_hi:[0,1]")
        for h in (0,2):
            if j == 0: pk("mul", Q[h], TMP[h], TMP[h])
            else: pk("fma", Q[h], TMP[h], TMP[h], Q[h])
    e("s_nop 0")
    allred(Q)
    c("publish partials (never the marker pattern)")
    for i in range(4): e(f"v_cndmask_b32 v{PUB[i]}, v{S[i]}, v{Q[i]}, s[54:55]")
    for i in range(4): e(f"v_min_u32 v{PUB[i]}, -2, v{PUB[i]}")
    e("s_mov_b32 exec_lo, 0x00030003")
    e("s_mov_b32 exec_hi, 0x00030003")
    e(f"buffer_store_dwordx4 v[{PUB[0]}:{PUB[3]}], v240, s[40:43], s58 offen sc1")
    e("s_mov_b64 exec, -1")
    stamp(4)
    c("constants while waiting")
    e("v_cmp_eq_u32 s[54:55], 15, v10")
    e("v_mov_b32 v76, 0x43000000")
    e("v_mov_b32 v77, 0x42920000")
    e("v_mov_b32 v78, 0x%08x" % f2u(1.0/128))
    e("v_mov_b32 v79, 0x%08x" % f2u(1.0/73))
    e("v_cndmask_b32 v76, v76, v77, s[54:55]")
    e("v_cndmask_b32 v78, v78, v79, s[54:55]")
    e("s_mul_i32 s44, s20, 2040832")
    e("s_add_u32 s36, s14, s44")
    e("s_addc_u32 s37, s15, 0")
    e("s_and_b32 s37, s37, 0xffff")
    e("s_mov_b32 s38, 2040832")
    e("s_mov_b32 s39, 0x00020000")
    e("s_mov_b32 s45, 0x%08x" % f2u(1.0/1993))
    e("s_mov_b32 s46, 0x%08x" % f2u(1e-5))
    e("v_lshlrev_b32 v100, 16, v234")
    e("v_and_b32 v101, 0xffff0000, v234")
    e("v_lshlrev_b32 v102, 16, v235")
    e("v_and_b32 v103, 0xffff0000, v235")
    e("v_lshlrev_b32 v104, 16, v236")
    e("v_and_b32 v105, 0xffff0000, v236")
    e("v_lshlrev_b32 v106, 16, v237")
    e("v_and_b32 v107, 0xffff0000, v237")
    e("v_lshlrev_b32 v13, 3, v10")
    e("v_add_u32 v13, s51, v13")
    e("v_lshlrev_b32 v13, 10, v13")
    e("v_add_u32 v13, v13, v12")
    e("s_mov_b32 s47, 4096")
    k = -2.0 * math.sqrt(2.0/math.pi) * math.log2(math.e)
    e("v_mov_b32 v108, 0x%08x" % f2u(k * 0.044715))
    e("v_mov_b32 v109, 0x%08x" % f2u(k * 0.044715))
    e("v_mov_b32 v110, 0x%08x" % f2u(k))
    e("v_mov_b32 v111, 0x%08x" % f2u(k))
    e("v_mov_b32 v112, 1.0")
    e("v_mov_b32 v113, 1.0")
    e("v_mov_b32 v14, s46")
    e("s_mov_b32 s76, 0x100000")
    c("wait: all workgroups of the group have cleared their slots in this launch")
    e("s_waitcnt vmcnt(1)")
    lab("L_cpoll")
    e("v_readfirstlane_b32 s77, v245")
    e("s_cmp_ge_u32 s77, 16")
    e("s_cbranch_scc1 L_dstart")
    e("s_sub_u32 s76, s76, 1")
    e("s_cbranch_scc1 L_dstart")
    e("s_sleep 2")
    e("global_load_dword v245, v244, s[16:17] sc1")
    e("s_waitcnt vmcnt(0)")
    e("s_branch L_cpoll")
    lab("L_dstart")
    e("s_mov_b32 s76, 0x100000")
    lab("L_dpoll")
    e("buffer_load_dwordx4 v[68:71], v241, s[40:43], s57 offen sc1")
    e("buffer_load_dwordx4 v[72:75], v241, s[40:43], s57 offen offset:16 sc1")
    e("s_waitcnt vmcnt(0)")
    e("v_max3_u32 v15, v68, v69, v70")
    e("v_max3_u32 v1, v71, v72, v73")
    e("v_max3_u32 v15, v15, v74, v75")
    e("v_max_u32 v15, v15, v1")
    e("v_cmp_eq_u32 vcc, -1, v15")
    e("s_cbranch_vccz L_ddone")
    e("s_sub_u32 s76, s76, 1")
    e("s_cbranch_scc0 L_dpoll")
    lab("L_ddone")
    stamp(5)
    PS = [68,69,70,71]; PM = [72,73,74,75]
    for i in range(4): e(f"v_mov_b32 v{S[i]}, v{PS[i]}")
    allred(S)
    for i in range(4): e(f"v_mul_f32 v{M[i]}, s45, v{S[i]}")
    for i in range(4): e(f"v_fma_f32 v{TMP[i]}, v{PS[i]}, v78, -v{M[i]}")
    for i in range(4): e(f"v_mul_f32 v{TMP[i]}, v{TMP[i]}, v{TMP[i]}")
    for i in range(4): e(f"v_fma_f32 v{Q[i]}, v{TMP[i]}, v76, v{PM[i]}")
    allred(Q)
    for i in range(4): e(f"v_fma_f32 v{Q[i]}, v{Q[i]}, s45, v14")
    for i in range(4): e(f"v_rsq_f32 v{Q[i]}, v{Q[i]}")
    e("s_nop 0")
    for i in range(4): e(f"v_mul_f32 v{Q[i]}, v{Q[i]}, v{100+i}")
    for i in range(4): e(f"v_fma_f32 v{M[i]}, -v{M[i]}, v{Q[i]}, v{104+i}")
    stamp(6)
    for j0 in range(0, 8, 2):
        Zs = {}; Ps = {}
        for dj in range(2):
            Zs[dj] = 116 + 8*dj; Ps[dj] = 120 + 8*dj
        for dj in range(2):
            for h in (0,2): pk("fma", Zs[dj]+h, AR(j0+dj,h), Q[h], M[h])
        for dj in range(2):
            for h in (0,2): pk("mul", Ps[dj]+h, Zs[dj]+h, Zs[dj]+h)
        for dj in range(2):
            for h in (0,2): pk("fma", Ps[dj]+h, Ps[dj]+h, 108, 110)
        for dj in range(2):
            for h in (0,2): pk("mul", Ps[dj]+h, Ps[dj]+h, Zs[dj]+h)
        for dj in range(2):
            for i in range(4): e(f"v_exp_f32 v{Ps[dj]+i}, v{Ps[dj]+i}")
        for dj in range(2):
            for h in (0,2): pk("add", Ps[dj]+h, Ps[dj]+h, 112)
        for dj in range(2):
            for i in range(4): e(f"v_rcp_f32 v{Ps[dj]+i}, v{Ps[dj]+i}")
        for dj in range(2):
            for h in (0,2): pk("mul", Zs[dj]+h, Zs[dj]+h, Ps[dj]+h)
        for dj in range(2):
            j = j0 + dj
            o = 136 + 2*j
            e(f"v_cvt_pk_bf16_f32 v{o}, v{Zs[dj]}, v{Zs[dj]+1}")
            e(f"v_cvt_pk_bf16_f32 v{o+1}, v{Zs[dj]+2}, v{Zs[dj]+3}")
            if j < 4:
                e(f"buffer_store_dwordx2 v[{o}:{o+1}], v13, s[36:39], 0 offen offset:{j*1024}{OSTF}")
            else:
                e(f"buffer_store_dwordx2 v[{o}:{o+1}], v13, s[36:39], s47 offen offset:{(j-4)*1024}{OSTF}")
    if STAMP:
        e("s_waitcnt vmcnt(0)")
        stamp(7)
        e("s_waitcnt lgkmcnt(0)")
        e("s_cmp_eq_u32 s23, 0")
        e("s_cbranch_scc0 L_nostamp")
        for kk in range(8): e(f"v_mov_b32 v{100+kk}, s{80+2*kk}")
        e("v_mov_b32 v108, s96")
        e("v_mov_b32 v109, s98")
        e("s_getreg_b32 s60, hwreg(HW_REG_XCC_ID)")
        e("v_mov_b32 v110, s60")
        e("v_mov_b32 v111, 0")
        e("s_lshl_b32 s60, s2, 7")
        e("s_add_u32 s60, s60, 0x100000")
        e("s_mov_b32 s42, 0x200000")
        e("v_mov_b32 v14, 0")
        e("s_mov_b64 exec, 1")
        e("buffer_store_dwordx4 v[100:103], v14, s[40:43], s60 offen")
        e("buffer_store_dwordx4 v[104:107], v14, s[40:43], s60 offen offset:16")
        e("buffer_store_dwordx4 v[108:111], v14, s[40:43], s60 offen offset:32")
        if "-dbgstamp" in OPT:
            e("s_cmp_eq_u32 s2, 0")
            e("s_cselect_b32 s60, 0, 32")
            e("s_cmp_eq_u32 s2, 9")
            e("s_cselect_b32 s61, 1, 0")
            e("s_cmp_eq_u32 s2, 0")
            e("s_cselect_b32 s61, 1, s61")
            e("s_cmp_eq_u32 s61, 1")
            e("s_cbranch_scc0 L_nostamp")
            for kk in range(1, 8): e(f"v_subrev_u32 v{100+kk}, s80, v{100+kk}")
            e("v_mov_b32 v14, s60")
            e("global_store_dwordx4 v14, v[100:103], s[16:17]")
            e("global_store_dwordx4 v14, v[104:107], s[16:17] offset:16")
        lab("L_nostamp")
    e("s_endpgm")

    lab("L_producer")
    c("=== producer === pw = wave-4 (s24); g = lane>>3 (v10); pos = lane&7 (v11)")
    if "-pprio" in OPT: e("s_setprio 3")
    stamp(0)
    e("s_sub_u32 s24, s23, 4")
    e("v_lshrrev_b32 v10, 3, v0")
    e("v_and_b32 v11, 7, v0")
    e("v_and_b32 v12, 2, v10")
    e("s_and_b32 s25, s24, 1")
    e("s_lshl_b32 s25, s25, 2")
    e("v_or_b32 v12, s25, v12")
    e("v_xor_b32 v12, v12, v11")
    e("s_lshl_b32 s25, s24, 3")
    e("v_add_u32 v13, s25, v10")
    e("v_lshlrev_b32 v13, 10, v13")
    e("v_lshl_add_u32 v2, v12, 4, v13")
    e("s_lshl_b32 s25, s24, 1")
    for i in range(5):
        e(f"v_add_u32 v12, {8*i}, v10")
        e("v_cmp_le_u32 vcc, 17, v12")
        e("v_subrev_u32 v13, 17, v12")
        e("v_mov_b32 v14, s25")
        e("v_cndmask_b32 v12, v12, v13, vcc")
        e("v_addc_co_u32 v14, vcc, 0, v14, vcc")
        e("v_mul_u32_u24 v16, 3, v12")
        e("v_lshrrev_b64 v[16:17], v16, s[26:27]")
        e("v_and_b32 v16, 7, v16")
        e("v_xor_b32 v16, v16, v11")
        e("v_lshl_add_u32 v12, v12, 3, v14")
        e("v_lshlrev_b32 v12, 11, v12")
        e(f"v_lshl_add_u32 v{3+i}, v16, 4, v12")
    e("s_mul_i32 s48, s20, 4000")
    e("s_lshl_b32 s50, s22, 8")
    e("s_add_u32 s48, s48, s50")
    e("s_lshl_b32 s48, s48, 10")
    e("s_lshl_b32 s49, s21, 7")
    c("K rotation: start chunk s55; s46/s47 = un-rotated bases")
    e("s_mov_b32 s46, s48")
    e("s_mov_b32 s47, s49")
    if "-rot" in OPT:
        e("s_and_b32 s55, s22, 7")
    elif "-rot2" in OPT:
        e("s_and_b32 s55, s21, 6")
        e("s_add_u32 s55, s55, s22")
        e("s_and_b32 s55, s55, 7")
    else:
        e("s_mov_b32 s55, 0")
    e("s_lshl_b32 s54, s55, 7")
    e("s_add_u32 s48, s46, s54")
    e("s_lshl_b32 s54, s55, 16")
    e("s_add_u32 s49, s47, s54")
    e("s_lshl_b32 s52, s24, 10")
    e("s_mul_i32 s53, s24, 4352")
    if "-spf" in OPT:
        spf_setup("s24")
        e("s_mov_b32 s74, 131072")
    def issueA(p):
        e(f"s_add_u32 s54, s48, {p*1024}")
        for i in range(5):
            e(f"s_add_u32 m0, s53, {ASLOT[p] + i*1024}")
            if i == 4: e("s_mov_b64 exec, 0xffff")
            else: e("s_nop 0")
            e(f"buffer_load_dwordx4 v{3+i}, s[28:31], s54 offen{DMAF} lds")
        e("s_mov_b64 exec, -1")
    def issueB(T):
        p, hh = T >> 1, T & 1
        for a in range(nT(T)):
            e(f"s_add_u32 m0, s52, {BSLOT[T] + a*4096}")
            e(f"s_add_u32 s54, s49, {(2*a+p)*524288 + hh*32768}")
            e(f"buffer_load_dwordx4 v2, s[32:35], s54 offen{DMAF} lds")
    stamp(1)
    issueA(0); issueB(0)
    stamp(2)
    if "-oldpro" in OPT:
        issueB(1); issueB(2); issueA(1); issueB(3)
        stamp(3)
        e("s_waitcnt vmcnt(27)")
        stamp(4)
        e("s_barrier")
        e("s_waitcnt vmcnt(19)")
        e("s_barrier")
    else:
        issueB(1)
        stamp(3)
        e("s_waitcnt vmcnt(8)")
        stamp(4)
        e("s_barrier")
        issueB(2)
        e("s_waitcnt vmcnt(7)")
        e("s_barrier")
        issueA(1); issueB(3)
    e("s_mov_b32 s50, 0")
    lab("L_ploop")
    e("s_add_u32 s55, s55, 1")
    e("s_and_b32 s55, s55, 7")
    e("s_lshl_b32 s54, s55, 7")
    e("s_add_u32 s48, s46, s54")
    e("s_lshl_b32 s54, s55, 16")
    e("s_add_u32 s49, s47, s54")
    W = [15, 21, 15, 19]
    for T in range(4):
        if T & 1: issueA(T >> 1)
        issueB(T)
        if "-spf" in OPT:
            e("s_cmp_lt_u32 s50, 6")
            e(f"s_cbranch_scc0 L_nospf_{T}")
            spf_issue(T, "s74")
            lab(f"L_nospf_{T}")
            if T == 3: e("s_add_u32 s74, s74, 65536")
        if T == 3:
            e("s_add_u32 s50, s50, 1")
            e("s_cmp_lt_u32 s50, 7")
        e(f"s_waitcnt vmcnt({W[T]})")
        e("s_barrier")
    e("s_cbranch_scc1 L_ploop")
    e("s_waitcnt vmcnt(7)")
    e("s_barrier")
    e("s_waitcnt vmcnt(0)")
    e("s_barrier")
    if STAMP:
        e("s_waitcnt lgkmcnt(0)")
        e("s_cmp_eq_u32 s23, 4")
        e("s_cbranch_scc0 L_end")
        for kk in range(5): e(f"v_mov_b32 v{100+kk}, s{80+2*kk}")
        e("s_mov_b32 s40, s18")
        e("s_and_b32 s41, s19, 0xffff")
        e("s_mov_b32 s42, 0x200000")
        e("s_mov_b32 s43, 0x00020000")
        e("s_lshl_b32 s60, s2, 7")
        e("s_add_u32 s60, s60, 0x100040")
        e("v_mov_b32 v14, 0")
        e("s_mov_b64 exec, 1")
        e("buffer_store_dwordx4 v[100:103], v14, s[40:43], s60 offen")
        e("buffer_store_dwordx4 v[104:107], v14, s[40:43], s60 offen offset:16")
    lab("L_end")
    e("s_endpgm")
    out.append('.section .rodata,"a"')
    out.append(".p2align 6")
    out.append(f".amdhsa_kernel {NAME}_kernel")
    out.append("  .amdhsa_next_free_vgpr 248")
    out.append("  .amdhsa_next_free_sgpr 102")
    out.append("  .amdhsa_accum_offset 248")
    out.append("  .amdhsa_group_segment_fixed_size 0")
    out.append("  .amdhsa_kernarg_size 64")
    out.append("  .amdhsa_user_sgpr_count 2")
    out.append("  .amdhsa_user_sgpr_kernarg_segment_ptr 1")
    out.append("  .amdhsa_system_sgpr_workgroup_id_x 1")
    out.append("  .amdhsa_float_denorm_mode_32 3")
    out.append(".end_amdhsa_kernel")
    return "\n".join(out) + "\n"

if __name__ == "__main__":
    t = gen()
    args = [a for a in sys.argv[1:] if not a.startswith("-")]
    path = args[0] if args else f"cdna_kernels/{NAME}.s"
    open(path, "w").write(t)
    print("wrote", path, len(t))
```

```python
import sys, struct, math

NAME = "standalone__self_sup_conv_stem_hubert__speech"
HEADER = """; Kernarg layout for this problem (64 bytes, ptrs only, base s[0:1]):
"""
OPT = set(a for a in sys.argv[1:] if a.startswith("-"))
STAMP = "-stamp" in OPT
NOPF = "-nopf" in OPT
OSTF = "".join(" " + f for f in ("sc0", "sc1", "nt") if "-ost" + f in OPT)
DMAF = "".join(" " + f for f in ("sc0", "sc1", "nt") if "-dma" + f in OPT)

ASLOT = [0, 17408]
BSLOT = [34816, 34816+32768, 34816+65536, 34816+65536+28672]
LDS_BYTES = BSLOT[3] + 28672
HT = 0x2f30ba77102c2

out = []
def e(s): out.append("    " + s)
def lab(s): out.append(s + ":")
def c(s): out.append("    ; " + s)
def stamp(k):
    if STAMP: e(f"s_memrealtime s[{80+2*k}:{81+2*k}]")
def f2u(x): return struct.unpack("<I", struct.pack("<f", x))[0]
def nT(T): return 8 - (T >> 1)

VA = {(0,0):2, (0,1):3, (1,0):4, (1,1):5}
VB = [6,7,8,9]
ACC = 16
FS = [48, 108]
BS = [168, 200]
def acc(j): return f"v[{ACC+4*j}:{ACC+4*j+3}]"
def F(s,t): return f"v[{FS[s]+4*t}:{FS[s]+4*t+3}]"
def Bf(s,a): return f"v[{BS[s]+4*a}:{BS[s]+4*a+3}]"

def reads_for(T, s):
    p, hh = T >> 1, T & 1
    n = nT(T)
    rA = []
    for t in range(n + 7):
        phi, sh = t & 7, t >> 3
        rA.append(f"ds_read_b128 {F(s,t)}, v{VA[(sh,hh)]} offset:{ASLOT[p] + 17*phi*128}")
    rB = []
    for a in range(n):
        b0 = BS[s] + 4*a
        rB.append([f"ds_read_b64_tr_b16 v[{b0}:{b0+1}], v{VB[T]} offset:{a*4096}",
                   f"ds_read_b64_tr_b16 v[{b0+2}:{b0+3}], v{VB[T]} offset:{a*4096+512}"])
    seq = rB[0] + rA[:8]
    for a in range(1, n):
        seq += rB[a] + [rA[7+a]]
    return seq

def spf_setup(wreg):
    e("s_lshr_b32 s64, s2, 3")
    e("s_lshl_b32 s65, s64, 4")
    e(f"s_lshl_b32 s69, {wreg}, 2")
    e("s_add_u32 s65, s65, s69")
    e("s_lshr_b32 s68, s65, 6")
    e("s_lshr_b32 s65, s65, 1")
    e("s_and_b32 s65, s65, 31")
    e("s_lshl_b32 s65, s65, 10")
    e("s_and_b32 s69, s21, 6")
    e("s_lshl_b32 s69, s69, 7")
    e("s_add_u32 s65, s65, s69")
    e("s_add_u32 s66, s6, s65")
    e("s_addc_u32 s67, s7, 0")
    e("s_lshl_b32 s68, s68, 20")
    e("s_min_u32 s69, s68, 0x600000")
    e("s_add_u32 s69, s69, 524288")
def spf_issue(T, chunk_sreg=None, chunk_imm=0):
    p, hh = T >> 1, T & 1
    e(f"s_add_u32 s70, s{69 if p else 68}, {hh*32768 + chunk_imm*65536}")
    if chunk_sreg is not None: e(f"s_add_u32 s70, s70, {chunk_sreg}")
    e("s_add_u32 s70, s66, s70")
    e("s_addc_u32 s71, s67, 0")
    for off in (0, 128, 1024, 1152):
        e(f"s_load_dword s72, s[70:71], {off}")

def ppf_block(mode):
    c("partner prefetch (only when partner N-tile is class 3): first chunk's w lines of ntile^1")
    e("s_and_b32 s60, s21, 3")
    e("s_cmp_eq_u32 s60, 2")
    e("s_cbranch_scc0 L_noppf")
    e("s_and_b32 s62, s22, 7")
    e("s_lshl_b32 s62, s62, 16")
    e("s_xor_b32 s63, s21, 1")
    e("s_lshl_b32 s63, s63, 7")
    e("s_add_u32 s62, s62, s63")
    e("s_lshr_b32 s63, s22, 3")
    for q in range(2 if mode == "all" else 1):
        if mode == "half":
            e("s_lshl_b32 s64, s23, 8")
            e("s_lshl_b32 s63, s63, 1")
            e("s_add_u32 s64, s64, s63")
            e("v_lshl_add_u32 v13, v0, 2, s64")
        elif mode == "late":
            e("s_lshl_b32 s64, s23, 7")
            e("s_add_u32 s64, s64, s63")
            e("s_add_u32 s64, s64, 512")
            e("v_lshl_add_u32 v13, v0, 1, s64")
        elif mode == "late3":
            e("s_lshl_b32 s64, s23, 7")
            e("s_add_u32 s64, s64, s63")
            e("s_add_u32 s64, s64, 448")
            e("v_lshl_add_u32 v13, v0, 1, s64")
        else:
            e(f"s_add_u32 s64, s23, {4*q}")
            e("s_lshl_b32 s64, s64, 7")
            e("s_add_u32 s64, s64, s63")
            e("v_lshl_add_u32 v13, v0, 1, s64")
        e("v_subrev_u32 v14, 512, v13")
        e("v_cmp_gt_u32 vcc, 512, v13")
        e("v_mov_b32 v1, 224")
        e("v_cmp_ge_i32 s[60:61], v14, v1")
        e("v_lshrrev_b32 v15, 8, v13")
        e("s_nop 0")
        e("v_cndmask_b32 v246, 0, 1, s[60:61]")
        e("v_cndmask_b32 v15, v246, v15, vcc")
        e("v_mul_u32_u24 v246, 224, v246")
        e("v_sub_u32 v14, v14, v246")
        e("v_and_b32 v246, 255, v13")
        e("v_cndmask_b32 v14, v14, v246, vcc")
        e("v_cndmask_b32 v246, 1, 0, vcc")
        e("v_lshrrev_b32 v247, 5, v14")
        e("v_lshl_add_u32 v246, v247, 1, v246")
        e("v_and_b32 v14, 31, v14")
        e("v_lshl_add_u32 v14, v15, 5, v14")
        e("v_lshlrev_b32 v14, 10, v14")
        e("v_lshl_add_u32 v14, v246, 19, v14")
        e("v_cmp_gt_u32 vcc, 960, v13")
        e("v_mov_b32 v1, 0x7fffff00")
        e("s_nop 0")
        e("v_cndmask_b32 v14, v1, v14, vcc")
        e("buffer_load_dword v238, v14, s[32:35], s62 offen")
    lab("L_noppf")

def gen():
    out.append(HEADER.rstrip("\n"))
    out.append(f"; @launch grid=(256,1,1) block=(512,1,1) lds={LDS_BYTES}")
    out.append('.amdgcn_target "amdgcn-amd-amdhsa--gfx950"')
    out.append(".text")
    out.append(f".globl {NAME}_kernel")
    out.append(".p2align 8")
    out.append(f".type {NAME}_kernel,@function")
    lab(f"{NAME}_kernel")
    e("s_cmp_ge_u32 s2, 256")
    e("s_cbranch_scc1 L_end")
    e("s_load_dwordx4 s[4:7], s[0:1], 0")
    e("s_load_dwordx4 s[8:11], s[0:1], 16")
    e("s_load_dwordx4 s[12:15], s[0:1], 32")
    e("s_load_dwordx4 s[16:19], s[0:1], 48")
    c("decode workgroup: xcd = wg&7, idx = wg>>3; batch = xcd>>2; ntile = (xcd&3)*2 + (idx&1); mtile = idx>>1")
    e("s_and_b32 s24, s2, 7")
    e("s_lshr_b32 s25, s2, 3")
    e("s_lshr_b32 s20, s24, 2")
    e("s_and_b32 s21, s24, 3")
    e("s_lshl_b32 s21, s21, 1")
    e("s_and_b32 s26, s25, 1")
    e("s_add_u32 s21, s21, s26")
    e("s_lshr_b32 s22, s25, 1")
    e("v_lshrrev_b32 v1, 6, v0")
    e("v_and_b32 v0, 63, v0")
    e("s_nop 0")
    e("v_readfirstlane_b32 s23, v1")
    e("s_mov_b32 s26, 0x%x" % (HT & 0xffffffff))
    e("s_mov_b32 s27, 0x%x" % (HT >> 32))
    def srds():
        e("s_waitcnt lgkmcnt(0)")
        c("SRDs: x s[28:31], w s[32:35]")
        e("s_mov_b32 s28, s4")
        e("s_and_b32 s29, s5, 0xffff")
        e("s_mov_b32 s30, 8192000")
        e("s_mov_b32 s31, 0x00020000")
        e("s_mov_b32 s32, s6")
        e("s_and_b32 s33, s7, 0xffff")
        e("s_mov_b32 s34, 7864320")
        e("s_mov_b32 s35, 0x00020000")
    LATE = "-latewait" in OPT
    if not LATE: srds()
    e("s_cmp_ge_u32 s23, 4")
    e("s_cbranch_scc1 L_producer")

    c("=== consumer ===")
    if LATE: srds()
    if "-cprio" in OPT: e("s_setprio 3")
    stamp(0)
    c("v0 = lane; tau = lane&15 (v10), kq = lane>>4 (v11)")
    e("v_and_b32 v10, 15, v0")
    e("v_lshrrev_b32 v11, 4, v0")
    c("ws SRD s[40:43]; group s56; own slot offset s58; group base s57")
    e("s_mov_b32 s40, s18")
    e("s_and_b32 s41, s19, 0xffff")
    e("s_mov_b32 s42, 131072")
    e("s_mov_b32 s43, 0x00020000")
    e("s_lshl_b32 s56, s20, 3")
    e("s_add_u32 s56, s56, s21")
    e("s_lshl_b32 s57, s56, 13")
    e("s_lshl_b32 s59, s23, 7")
    e("s_add_u32 s57, s57, s59")
    e("s_lshl_b32 s58, s22, 9")
    e("s_add_u32 s58, s58, s57")
    c("clear own slot with the marker (lanes tau<2)")
    e("v_lshlrev_b32 v13, 5, v11")
    e("v_lshl_add_u32 v240, v10, 4, v13")
    e("v_lshl_add_u32 v241, v10, 9, v13")
    for i in range(4): e(f"v_mov_b32 v{64+i}, -1")
    e("s_mov_b32 exec_lo, 0x00030003")
    e("s_mov_b32 exec_hi, 0x00030003")
    e("buffer_store_dwordx4 v[64:67], v240, s[40:43], s58 offen sc1")
    e("s_mov_b64 exec, -1")
    c("param loads: channel = n0 + 16*w + 4*kq -> byte off")
    e("s_lshl_b32 s48, s21, 7")
    e("s_lshl_b32 s49, s23, 5")
    e("s_add_u32 s48, s48, s49")
    e("v_lshlrev_b32 v12, 3, v11")
    e("v_add_u32 v12, s48, v12")
    e("global_load_dwordx2 v[232:233], v12, s[8:9]")
    e("global_load_dwordx2 v[234:235], v12, s[10:11]")
    e("global_load_dwordx2 v[236:237], v12, s[12:13]")
    npf = 0
    PFD = 2
    for o in OPT:
        if o.startswith("-pfd"): PFD = int(o[4:])
    if not NOPF and "-pflin" in OPT:
        c("linear prefetch offsets: L = wg*32 + w*8 + lane (lane<8)")
        e("s_lshl_b32 s50, s2, 5")
        e("s_lshl_b32 s51, s23, 3")
        e("s_add_u32 s50, s50, s51")
        e("v_add_u32 v13, s50, v0")
        e("v_cmp_gt_u32 vcc, 8, v0")
        e("v_lshrrev_b32 v14, 9, v13")
        e("v_lshlrev_b32 v14, 19, v14")
        e("v_and_b32 v15, 511, v13")
        e("v_lshl_add_u32 v14, v15, 7, v14")
        e("v_lshlrev_b32 v15, 10, v13")
        e("v_mov_b32 v1, 0x7fffff00")
        e("v_cndmask_b32 v242, v1, v14, vcc")
        e("v_cndmask_b32 v243, v1, v15, vcc")
    elif not NOPF:
        c("XCD-local L2 prefetch offsets: u = (wg>>3)*4 + w")
        e("s_lshr_b32 s50, s2, 3")
        e("s_lshl_b32 s50, s50, 2")
        e("s_add_u32 s50, s50, s23")
        e("v_mov_b32 v1, 0x7fffff00")
        c("x: row = u*32 + lane (lane<32, row<4000)")
        e("s_lshl_b32 s51, s50, 5")
        e("v_add_u32 v13, s51, v0")
        e("v_cmp_gt_u32 vcc, 4000, v13")
        e("v_cmp_gt_u32 s[60:61], 32, v0")
        e("s_mul_i32 s51, s20, 4000")
        e("v_add_u32 v13, s51, v13")
        e("v_lshlrev_b32 v13, 10, v13")
        e("s_and_b64 vcc, vcc, s[60:61]")
        e("s_nop 1")
        e("v_cndmask_b32 v243, v1, v13, vcc")
        c("w: L = u*16 + lane (lane<16): tap = L>>7, row = (L>>1)&63, half = L&1")
        e("s_lshl_b32 s51, s50, 4")
        e("v_add_u32 v13, s51, v0")
        e("v_cmp_gt_u32 vcc, 16, v0")
        e("v_lshrrev_b32 v14, 7, v13")
        e("v_lshlrev_b32 v14, 19, v14")
        e("v_bfe_u32 v15, v13, 1, 6")
        e("v_lshl_add_u32 v14, v15, 10, v14")
        e("v_and_b32 v15, 1, v13")
        e("v_lshl_add_u32 v14, v15, 7, v14")
        e("s_and_b32 s51, s21, 6")
        e("s_lshl_b32 s51, s51, 7")
        e("v_add_u32 v14, s51, v14")
        e("v_cndmask_b32 v242, v1, v14, vcc")
    if not NOPF:
        e("s_mov_b32 s78, 0")
        e("s_mov_b32 s79, 0")
        for d in range(PFD - 1):
            e("s_add_u32 s78, s78, 65536")
            e("s_add_u32 s79, s79, 128")
            e("buffer_load_dword v238, v242, s[32:35], s78 offen")
            e("buffer_load_dword v239, v243, s[28:31], s79 offen")
            npf += 2
    if "-pf3" in OPT:
        c("cooperative prefetch: wave w handles stage type w lines of the XCD's w slice; x quarter rows")
        e("s_lshr_b32 s50, s2, 3")
        e("v_mov_b32 v1, 0x7fffff00")
        e("s_lshl_b32 s51, s50, 4")
        e("v_add_u32 v13, s51, v0")
        e("v_cmp_gt_u32 vcc, 16, v0")
        e("v_lshrrev_b32 v14, 6, v13")
        e("s_lshr_b32 s51, s23, 1")
        e("v_lshl_add_u32 v14, v14, 1, s51")
        e("v_lshlrev_b32 v14, 19, v14")
        e("v_bfe_u32 v15, v13, 1, 5")
        e("v_lshl_add_u32 v14, v15, 10, v14")
        e("v_and_b32 v15, 1, v13")
        e("v_lshl_add_u32 v14, v15, 7, v14")
        e("s_and_b32 s51, s23, 1")
        e("s_lshl_b32 s51, s51, 15")
        e("s_and_b32 s52, s21, 6")
        e("s_lshl_b32 s52, s52, 7")
        e("s_add_u32 s51, s51, s52")
        e("v_add_u32 v14, s51, v14")
        e("v_cndmask_b32 v242, v1, v14, vcc")
        e("s_mov_b32 s78, 0")
        e("buffer_load_dword v238, v242, s[32:35], s78 offen")
        e("s_mov_b32 s78, 65536")
        e("buffer_load_dword v238, v242, s[32:35], s78 offen")
        c("x: r = (idx*4+w)*8 + lane (lane<8, r<1000); row = b*4000 + (ntile>>1)*1000 + r")
        e("s_lshl_b32 s50, s50, 2")
        e("s_add_u32 s50, s50, s23")
        e("s_lshl_b32 s50, s50, 3")
        e("v_add_u32 v13, s50, v0")
        e("v_cmp_gt_u32 vcc, 1000, v13")
        e("v_cmp_gt_u32 s[60:61], 8, v0")
        e("s_mul_i32 s51, s20, 4000")
        e("s_lshr_b32 s52, s21, 1")
        e("s_mul_i32 s52, s52, 1000")
        e("s_add_u32 s51, s51, s52")
        e("v_add_u32 v13, s51, v13")
        e("v_lshlrev_b32 v13, 10, v13")
        e("s_and_b64 vcc, vcc, s[60:61]")
        e("s_nop 1")
        e("v_cndmask_b32 v243, v1, v13, vcc")
        e("s_mov_b32 s79, 128")
        if "-nopfx" not in OPT:
            e("buffer_load_dword v239, v243, s[28:31], s79 offen")
    if "-ppf" in OPT: ppf_block("half" if "-ppfh" in OPT else "all")
    if "-ppfe" in OPT: ppf_block("late")
    if "-spf" in OPT:
        c("initial scalar prefetch burst: all four line groups of stage type w, chunks 0 and 1")
        for g4 in range(4):
            e(f"s_mov_b32 s73, {g4}")
            spf_setup("s73")
            for T in range(4):
                e(f"s_cmp_eq_u32 s23, {T}")
                e(f"s_cbranch_scc0 L_spf0_{g4}_{T}")
                spf_issue(T, None, 0)
                lab(f"L_spf0_{g4}_{T}")
        for g4 in range(4):
            e(f"s_mov_b32 s73, {g4}")
            spf_setup("s73")
            for T in range(4):
                e(f"s_cmp_eq_u32 s23, {T}")
                e(f"s_cbranch_scc0 L_spf1_{g4}_{T}")
                spf_issue(T, None, 1)
                lab(f"L_spf1_{g4}_{T}")
    c("A (x) read addresses")
    for sh in range(2):
        e(f"v_add_u32 v13, {sh}, v10")
        e("v_mul_u32_u24 v14, 3, v13")
        e("v_lshrrev_b64 v[14:15], v14, s[26:27]")
        e("v_and_b32 v14, 7, v14")
        e("v_xor_b32 v14, v14, v11")
        e("v_lshlrev_b32 v13, 7, v13")
        e("v_lshl_add_u32 v%d, v14, 4, v13" % VA[(sh,0)])
        e("v_xor_b32 v14, 4, v14")
        e("v_lshl_add_u32 v%d, v14, 4, v13" % VA[(sh,1)])
    c("B (w) read addresses")
    e("v_lshrrev_b32 v13, 2, v10")
    e("v_and_b32 v14, 3, v0")
    e("v_lshrrev_b32 v15, 1, v13")
    e("v_and_b32 v1, 1, v11")
    e("v_lshl_or_b32 v15, v1, 1, v15")
    e("v_xor_b32 v15, s23, v15")
    e("v_lshl_add_u32 v13, v11, 3, v13")
    e("v_lshlrev_b32 v13, 7, v13")
    e("v_lshl_add_u32 v13, v15, 5, v13")
    e("v_lshl_add_u32 v13, v14, 3, v13")
    for T in range(4):
        e(f"v_add_u32 v{VB[T]}, {BSLOT[T]}, v13")
    c("init acc with bias (this wait also covers the clear store)")
    e(f"s_waitcnt vmcnt({2+npf})")
    e("v_lshlrev_b32 v13, 16, v232")
    e("v_and_b32 v14, 0xffff0000, v232")
    e("v_lshlrev_b32 v15, 16, v233")
    e("v_and_b32 v1, 0xffff0000, v233")
    for j in range(8):
        e(f"v_mov_b32 v{ACC+4*j}, v13")
        e(f"v_mov_b32 v{ACC+4*j+1}, v14")
        e(f"v_mov_b32 v{ACC+4*j+2}, v15")
        e(f"v_mov_b32 v{ACC+4*j+3}, v1")
    e("s_lshl_b32 s59, s56, 2")
    e("s_add_u32 s59, s59, 128")
    e("v_mov_b32 v244, s59")
    e("s_barrier")
    stamp(1)
    for r in reads_for(0, 0): e(r)
    if "-ppfl" in OPT: ppf_block("late")
    if "-ppfl3" in OPT: ppf_block("late3")
    c("wave 0: signal 'cleared'")
    e("s_cmp_eq_u32 s23, 0")
    e("s_cbranch_scc0 L_nosig")
    e("v_mov_b32 v15, 1")
    e("s_mov_b64 exec, 1")
    e("global_atomic_add v244, v15, s[16:17] sc1")
    e("s_mov_b64 exec, -1")
    lab("L_nosig")
    e("s_mov_b32 s50, 0")
    e("s_waitcnt lgkmcnt(0)")
    e("s_barrier")
    stamp(2)
    if STAMP: e("s_memtime s[96:97]")
    lab("L_cloop")
    for T in range(4):
        s = T & 1
        Tn = (T + 1) & 3
        rd = reads_for(Tn, s ^ 1)
        pos = {}
        for k, r in enumerate(rd):
            pos.setdefault((k * 3) // 2, []).append(r)
        m = 0
        c(f"phase type {T}")
        order = [(a, j) for a in range(nT(T)) for j in range(8)]
        if "-jmajor" in OPT: order = [(a, j) for j in range(8) for a in range(nT(T))]
        for (a, j) in order:
            e(f"v_mfma_f32_16x16x32_bf16 {acc(j)}, {Bf(s,a)}, {F(s,j+a)}, {acc(j)}")
            for r in pos.get(m, []): e(r)
            if T == 0 and m == 50 and not NOPF:
                e(f"s_cmp_lt_u32 s50, {8-PFD}")
                e("s_cbranch_scc0 L_nopf")
                e("s_add_u32 s78, s78, 65536")
                e("s_add_u32 s79, s79, 128")
                e("buffer_load_dword v238, v242, s[32:35], s78 offen")
                e("buffer_load_dword v239, v243, s[28:31], s79 offen")
                lab("L_nopf")
            if m == 50 and "-pf3" in OPT:
                e(f"s_cmp_eq_u32 s23, {T}")
                e(f"s_cbranch_scc0 L_nopf3_{T}")
                e("s_cmp_lt_u32 s50, 6")
                e(f"s_cbranch_scc0 L_nopf3_{T}")
                e("s_add_u32 s78, s78, 65536")
                e("s_add_u32 s79, s79, 128")
                e("buffer_load_dword v238, v242, s[32:35], s78 offen")
                if "-nopfx" not in OPT:
                    e("buffer_load_dword v239, v243, s[28:31], s79 offen")
                lab(f"L_nopf3_{T}")
            m += 1
        if T == 3:
            e("s_add_u32 s50, s50, 1")
            e("s_cmp_lt_u32 s50, 8")
        e("s_waitcnt lgkmcnt(0)")
        e("s_barrier")
    e("s_cbranch_scc1 L_cloop")

    c("=== epilogue ===")
    stamp(3)
    if STAMP: e("s_memtime s[98:99]")
    A = lambda j,i: f"v{ACC+4*j+i}"
    S = [48,49,50,51]; M = [52,53,54,55]; Q = [56,57,58,59]; TMP = [60,61,62,63]; PUB=[64,65,66,67]
    e("global_load_dword v245, v244, s[16:17] sc1")
    e("s_lshl_b32 s51, s22, 7")
    e("s_sub_u32 s52, 1993, s51")
    e("v_lshlrev_b32 v13, 3, v10")
    e("v_sub_u32 v13, s52, v13")
    for j in range(8):
        e(f"v_cmp_lt_i32 s[{60+2*j}:{61+2*j}], {j}, v13")
    e("v_cmp_eq_u32 s[54:55], 1, v10")
    e("s_mov_b32 s53, 0x%08x" % f2u(1.0/128))
    e("s_cmp_eq_u32 s22, 15")
    e("s_cbranch_scc0 L_nomask1")
    e("s_mov_b32 s53, 0x%08x" % f2u(1.0/73))
    for j in range(8):
        for i in range(4):
            e(f"v_cndmask_b32 {A(j,i)}, 0, {A(j,i)}, s[{60+2*j}:{61+2*j}]")
    lab("L_nomask1")
    def pk(op, d, a, b, cc=None):
        if cc is None: e(f"v_pk_{op}_f32 v[{d}:{d+1}], v[{a}:{a+1}], v[{b}:{b+1}]")
        else: e(f"v_pk_{op}_f32 v[{d}:{d+1}], v[{a}:{a+1}], v[{b}:{b+1}], v[{cc}:{cc+1}]")
    AR = lambda j,i: ACC+4*j+i
    for h in (0,2): pk("add", S[h], AR(0,h), AR(1,h))
    for h in (0,2): pk("add", TMP[h], AR(2,h), AR(3,h))
    for h in (0,2): pk("add", M[h], AR(4,h), AR(5,h))
    for h in (0,2): pk("add", Q[h], AR(6,h), AR(7,h))
    for h in (0,2): pk("add", S[h], S[h], TMP[h])
    for h in (0,2): pk("add", M[h], M[h], Q[h])
    for h in (0,2): pk("add", S[h], S[h], M[h])
    e("s_nop 0")
    def allred(R):
        for sh in (8,4,2,1):
            for i in range(4):
                e(f"v_add_f32_dpp v{R[i]}, v{R[i]}, v{R[i]} row_ror:{sh} row_mask:0xf bank_mask:0xf")
    allred(S)
    for i in range(4): e(f"v_mul_f32 v{M[i]}, s53, v{S[i]}")
    e("s_cmp_eq_u32 s22, 15")
    e("s_cbranch_scc0 L_nomask2")
    for j in range(8):
        for i in range(4):
            e(f"v_cndmask_b32 {A(j,i)}, v{M[i]}, {A(j,i)}, s[{60+2*j}:{61+2*j}]")
    lab("L_nomask2")
    for j in range(8):
        for h in (0,2): e(f"v_pk_add_f32 v[{TMP[h]}:{TMP[h]+1}], v[{AR(j,h)}:{AR(j,h)+1}], v[{M[h]}:{M[h]+1}] neg_lo:[0,1] neg_hi:[0,1]")
        for h in (0,2):
            if j == 0: pk("mul", Q[h], TMP[h], TMP[h])
            else: pk("fma", Q[h], TMP[h], TMP[h], Q[h])
    e("s_nop 0")
    allred(Q)
    c("publish partials (never the marker pattern)")
    for i in range(4): e(f"v_cndmask_b32 v{PUB[i]}, v{S[i]}, v{Q[i]}, s[54:55]")
    for i in range(4): e(f"v_min_u32 v{PUB[i]}, -2, v{PUB[i]}")
    e("s_mov_b32 exec_lo, 0x00030003")
    e("s_mov_b32 exec_hi, 0x00030003")
    e(f"buffer_store_dwordx4 v[{PUB[0]}:{PUB[3]}], v240, s[40:43], s58 offen sc1")
    e("s_mov_b64 exec, -1")
    stamp(4)
    c("constants while waiting")
    e("v_cmp_eq_u32 s[54:55], 15, v10")
    e("v_mov_b32 v76, 0x43000000")
    e("v_mov_b32 v77, 0x42920000")
    e("v_mov_b32 v78, 0x%08x" % f2u(1.0/128))
    e("v_mov_b32 v79, 0x%08x" % f2u(1.0/73))
    e("v_cndmask_b32 v76, v76, v77, s[54:55]")
    e("v_cndmask_b32 v78, v78, v79, s[54:55]")
    e("s_mul_i32 s44, s20, 2040832")
    e("s_add_u32 s36, s14, s44")
    e("s_addc_u32 s37, s15, 0")
    e("s_and_b32 s37, s37, 0xffff")
    e("s_mov_b32 s38, 2040832")
    e("s_mov_b32 s39, 0x00020000")
    e("s_mov_b32 s45, 0x%08x" % f2u(1.0/1993))
    e("s_mov_b32 s46, 0x%08x" % f2u(1e-5))
    e("v_lshlrev_b32 v100, 16, v234")
    e("v_and_b32 v101, 0xffff0000, v234")
    e("v_lshlrev_b32 v102, 16, v235")
    e("v_and_b32 v103, 0xffff0000, v235")
    e("v_lshlrev_b32 v104, 16, v236")
    e("v_and_b32 v105, 0xffff0000, v236")
    e("v_lshlrev_b32 v106, 16, v237")
    e("v_and_b32 v107, 0xffff0000, v237")
    e("v_lshlrev_b32 v13, 3, v10")
    e("v_add_u32 v13, s51, v13")
    e("v_lshlrev_b32 v13, 10, v13")
    e("v_add_u32 v13, v13, v12")
    e("s_mov_b32 s47, 4096")
    k = -2.0 * math.sqrt(2.0/math.pi) * math.log2(math.e)
    e("v_mov_b32 v108, 0x%08x" % f2u(k * 0.044715))
    e("v_mov_b32 v109, 0x%08x" % f2u(k * 0.044715))
    e("v_mov_b32 v110, 0x%08x" % f2u(k))
    e("v_mov_b32 v111, 0x%08x" % f2u(k))
    e("v_mov_b32 v112, 1.0")
    e("v_mov_b32 v113, 1.0")
    e("v_mov_b32 v14, s46")
    e("s_mov_b32 s76, 0x100000")
    c("wait: all workgroups of the group have cleared their slots in this launch")
    e("s_waitcnt vmcnt(1)")
    lab("L_cpoll")
    e("v_readfirstlane_b32 s77, v245")
    e("s_cmp_ge_u32 s77, 16")
    e("s_cbranch_scc1 L_dstart")
    e("s_sub_u32 s76, s76, 1")
    e("s_cbranch_scc1 L_dstart")
    e("s_sleep 2")
    e("global_load_dword v245, v244, s[16:17] sc1")
    e("s_waitcnt vmcnt(0)")
    e("s_branch L_cpoll")
    lab("L_dstart")
    e("s_mov_b32 s76, 0x100000")
    lab("L_dpoll")
    e("buffer_load_dwordx4 v[68:71], v241, s[40:43], s57 offen sc1")
    e("buffer_load_dwordx4 v[72:75], v241, s[40:43], s57 offen offset:16 sc1")
    e("s_waitcnt vmcnt(0)")
    e("v_max3_u32 v15, v68, v69, v70")
    e("v_max3_u32 v1, v71, v72, v73")
    e("v_max3_u32 v15, v15, v74, v75")
    e("v_max_u32 v15, v15, v1")
    e("v_cmp_eq_u32 vcc, -1, v15")
    e("s_cbranch_vccz L_ddone")
    e("s_sub_u32 s76, s76, 1")
    e("s_cbranch_scc0 L_dpoll")
    lab("L_ddone")
    stamp(5)
    PS = [68,69,70,71]; PM = [72,73,74,75]
    for i in range(4): e(f"v_mov_b32 v{S[i]}, v{PS[i]}")
    allred(S)
    for i in range(4): e(f"v_mul_f32 v{M[i]}, s45, v{S[i]}")
    for i in range(4): e(f"v_fma_f32 v{TMP[i]}, v{PS[i]}, v78, -v{M[i]}")
    for i in range(4): e(f"v_mul_f32 v{TMP[i]}, v{TMP[i]}, v{TMP[i]}")
    for i in range(4): e(f"v_fma_f32 v{Q[i]}, v{TMP[i]}, v76, v{PM[i]}")
    allred(Q)
    for i in range(4): e(f"v_fma_f32 v{Q[i]}, v{Q[i]}, s45, v14")
    for i in range(4): e(f"v_rsq_f32 v{Q[i]}, v{Q[i]}")
    e("s_nop 0")
    for i in range(4): e(f"v_mul_f32 v{Q[i]}, v{Q[i]}, v{100+i}")
    for i in range(4): e(f"v_fma_f32 v{M[i]}, -v{M[i]}, v{Q[i]}, v{104+i}")
    stamp(6)
    for j0 in range(0, 8, 2):
        Zs = {}; Ps = {}
        for dj in range(2):
            Zs[dj] = 116 + 8*dj; Ps[dj] = 120 + 8*dj
        for dj in range(2):
            for h in (0,2): pk("fma", Zs[dj]+h, AR(j0+dj,h), Q[h], M[h])
        for dj in range(2):
            for h in (0,2): pk("mul", Ps[dj]+h, Zs[dj]+h, Zs[dj]+h)
        for dj in range(2):
            for h in (0,2): pk("fma", Ps[dj]+h, Ps[dj]+h, 108, 110)
        for dj in range(2):
            for h in (0,2): pk("mul", Ps[dj]+h, Ps[dj]+h, Zs[dj]+h)
        for dj in range(2):
            for i in range(4): e(f"v_exp_f32 v{Ps[dj]+i}, v{Ps[dj]+i}")
        for dj in range(2):
            for h in (0,2): pk("add", Ps[dj]+h, Ps[dj]+h, 112)
        for dj in range(2):
            for i in range(4): e(f"v_rcp_f32 v{Ps[dj]+i}, v{Ps[dj]+i}")
        for dj in range(2):
            for h in (0,2): pk("mul", Zs[dj]+h, Zs[dj]+h, Ps[dj]+h)
        for dj in range(2):
            j = j0 + dj
            o = 136 + 2*j
            e(f"v_cvt_pk_bf16_f32 v{o}, v{Zs[dj]}, v{Zs[dj]+1}")
            e(f"v_cvt_pk_bf16_f32 v{o+1}, v{Zs[dj]+2}, v{Zs[dj]+3}")
            if j < 4:
                e(f"buffer_store_dwordx2 v[{o}:{o+1}], v13, s[36:39], 0 offen offset:{j*1024}{OSTF}")
            else:
                e(f"buffer_store_dwordx2 v[{o}:{o+1}], v13, s[36:39], s47 offen offset:{(j-4)*1024}{OSTF}")
    if STAMP:
        e("s_waitcnt vmcnt(0)")
        stamp(7)
        e("s_waitcnt lgkmcnt(0)")
        e("s_cmp_eq_u32 s23, 0")
        e("s_cbranch_scc0 L_nostamp")
        for kk in range(8): e(f"v_mov_b32 v{100+kk}, s{80+2*kk}")
        e("v_mov_b32 v108, s96")
        e("v_mov_b32 v109, s98")
        e("s_getreg_b32 s60, hwreg(HW_REG_XCC_ID)")
        e("v_mov_b32 v110, s60")
        e("v_mov_b32 v111, 0")
        e("s_lshl_b32 s60, s2, 7")
        e("s_add_u32 s60, s60, 0x100000")
        e("s_mov_b32 s42, 0x200000")
        e("v_mov_b32 v14, 0")
        e("s_mov_b64 exec, 1")
        e("buffer_store_dwordx4 v[100:103], v14, s[40:43], s60 offen")
        e("buffer_store_dwordx4 v[104:107], v14, s[40:43], s60 offen offset:16")
        e("buffer_store_dwordx4 v[108:111], v14, s[40:43], s60 offen offset:32")
        if "-dbgstamp" in OPT:
            e("s_cmp_eq_u32 s2, 0")
            e("s_cselect_b32 s60, 0, 32")
            e("s_cmp_eq_u32 s2, 9")
            e("s_cselect_b32 s61, 1, 0")
            e("s_cmp_eq_u32 s2, 0")
            e("s_cselect_b32 s61, 1, s61")
            e("s_cmp_eq_u32 s61, 1")
            e("s_cbranch_scc0 L_nostamp")
            for kk in range(1, 8): e(f"v_subrev_u32 v{100+kk}, s80, v{100+kk}")
            e("v_mov_b32 v14, s60")
            e("global_store_dwordx4 v14, v[100:103], s[16:17]")
            e("global_store_dwordx4 v14, v[104:107], s[16:17] offset:16")
        lab("L_nostamp")
    e("s_endpgm")

    lab("L_producer")
    c("=== producer === pw = wave-4 (s24); g = lane>>3 (v10); pos = lane&7 (v11)")
    if "-pprio" in OPT: e("s_setprio 3")
    stamp(0)
    e("s_sub_u32 s24, s23, 4")
    e("v_lshrrev_b32 v10, 3, v0")
    e("v_and_b32 v11, 7, v0")
    e("v_and_b32 v12, 2, v10")
    e("s_and_b32 s25, s24, 1")
    e("s_lshl_b32 s25, s25, 2")
    e("v_or_b32 v12, s25, v12")
    e("v_xor_b32 v12, v12, v11")
    e("s_lshl_b32 s25, s24, 3")
    e("v_add_u32 v13, s25, v10")
    e("v_lshlrev_b32 v13, 10, v13")
    e("v_lshl_add_u32 v2, v12, 4, v13")
    def avoff():
        e("s_lshl_b32 s25, s24, 1")
        for i in range(5):
            e(f"v_add_u32 v12, {8*i}, v10")
            e("v_cmp_le_u32 vcc, 17, v12")
            e("v_subrev_u32 v13, 17, v12")
            e("v_mov_b32 v14, s25")
            e("v_cndmask_b32 v12, v12, v13, vcc")
            e("v_addc_co_u32 v14, vcc, 0, v14, vcc")
            e("v_mul_u32_u24 v16, 3, v12")
            e("v_lshrrev_b64 v[16:17], v16, s[26:27]")
            e("v_and_b32 v16, 7, v16")
            e("v_xor_b32 v16, v16, v11")
            e("v_lshl_add_u32 v12, v12, 3, v14")
            e("v_lshlrev_b32 v12, 11, v12")
            e(f"v_lshl_add_u32 v{3+i}, v16, 4, v12")
    if "-bfirst" not in OPT: avoff()
    e("s_mul_i32 s48, s20, 4000")
    e("s_lshl_b32 s50, s22, 8")
    e("s_add_u32 s48, s48, s50")
    e("s_lshl_b32 s48, s48, 10")
    e("s_lshl_b32 s49, s21, 7")
    c("K rotation: start chunk s55; s46/s47 = un-rotated bases")
    e("s_mov_b32 s46, s48")
    e("s_mov_b32 s47, s49")
    if "-rot" in OPT:
        e("s_and_b32 s55, s22, 7")
    elif "-rot2" in OPT:
        e("s_and_b32 s55, s21, 6")
        e("s_add_u32 s55, s55, s22")
        e("s_and_b32 s55, s55, 7")
    else:
        e("s_mov_b32 s55, 0")
    e("s_lshl_b32 s54, s55, 7")
    e("s_add_u32 s48, s46, s54")
    e("s_lshl_b32 s54, s55, 16")
    e("s_add_u32 s49, s47, s54")
    e("s_lshl_b32 s52, s24, 10")
    e("s_mul_i32 s53, s24, 4352")
    if "-spf" in OPT:
        spf_setup("s24")
        e("s_mov_b32 s74, 131072")
    def issueA(p):
        e(f"s_add_u32 s54, s48, {p*1024}")
        for i in range(5):
            e(f"s_add_u32 m0, s53, {ASLOT[p] + i*1024}")
            if i == 4: e("s_mov_b64 exec, 0xffff")
            else: e("s_nop 0")
            e(f"buffer_load_dwordx4 v{3+i}, s[28:31], s54 offen{DMAF} lds")
        e("s_mov_b64 exec, -1")
    def issueB(T):
        p, hh = T >> 1, T & 1
        for a in range(nT(T)):
            e(f"s_add_u32 m0, s52, {BSLOT[T] + a*4096}")
            e(f"s_add_u32 s54, s49, {(2*a+p)*524288 + hh*32768}")
            e(f"buffer_load_dwordx4 v2, s[32:35], s54 offen{DMAF} lds")
    if LATE: srds()
    stamp(1)
    if "-bfirst" in OPT:
        issueB(0); avoff(); issueA(0)
    else:
        issueA(0); issueB(0)
    stamp(2)
    if "-oldpro" in OPT:
        issueB(1); issueB(2); issueA(1); issueB(3)
        stamp(3)
        e("s_waitcnt vmcnt(27)")
        stamp(4)
        e("s_barrier")
        e("s_waitcnt vmcnt(19)")
        e("s_barrier")
    else:
        issueB(1)
        stamp(3)
        e("s_waitcnt vmcnt(8)")
        stamp(4)
        e("s_barrier")
        issueB(2)
        e("s_waitcnt vmcnt(7)")
        e("s_barrier")
        issueA(1); issueB(3)
    e("s_mov_b32 s50, 0")
    lab("L_ploop")
    e("s_add_u32 s55, s55, 1")
    e("s_and_b32 s55, s55, 7")
    e("s_lshl_b32 s54, s55, 7")
    e("s_add_u32 s48, s46, s54")
    e("s_lshl_b32 s54, s55, 16")
    e("s_add_u32 s49, s47, s54")
    W = [15, 21, 15, 19]
    for T in range(4):
        if T & 1: issueA(T >> 1)
        issueB(T)
        if "-spf" in OPT:
            e("s_cmp_lt_u32 s50, 6")
            e(f"s_cbranch_scc0 L_nospf_{T}")
            spf_issue(T, "s74")
            lab(f"L_nospf_{T}")
            if T == 3: e("s_add_u32 s74, s74, 65536")
        if T == 3:
            e("s_add_u32 s50, s50, 1")
            e("s_cmp_lt_u32 s50, 7")
        e(f"s_waitcnt vmcnt({W[T]})")
        e("s_barrier")
    e("s_cbranch_scc1 L_ploop")
    e("s_waitcnt vmcnt(7)")
    e("s_barrier")
    e("s_waitcnt vmcnt(0)")
    e("s_barrier")
    if STAMP:
        e("s_waitcnt lgkmcnt(0)")
        e("s_cmp_eq_u32 s23, 4")
        e("s_cbranch_scc0 L_end")
        for kk in range(5): e(f"v_mov_b32 v{100+kk}, s{80+2*kk}")
        e("s_mov_b32 s40, s18")
        e("s_and_b32 s41, s19, 0xffff")
        e("s_mov_b32 s42, 0x200000")
        e("s_mov_b32 s43, 0x00020000")
        e("s_lshl_b32 s60, s2, 7")
        e("s_add_u32 s60, s60, 0x100040")
        e("v_mov_b32 v14, 0")
        e("s_mov_b64 exec, 1")
        e("buffer_store_dwordx4 v[100:103], v14, s[40:43], s60 offen")
        e("buffer_store_dwordx4 v[104:107], v14, s[40:43], s60 offen offset:16")
    lab("L_end")
    e("s_endpgm")
    out.append('.section .rodata,"a"')
    out.append(".p2align 6")
    out.append(f".amdhsa_kernel {NAME}_kernel")
    out.append("  .amdhsa_next_free_vgpr 248")
    out.append("  .amdhsa_next_free_sgpr 102")
    out.append("  .amdhsa_accum_offset 248")
    out.append("  .amdhsa_group_segment_fixed_size 0")
    out.append("  .amdhsa_kernarg_size 64")
    out.append("  .amdhsa_user_sgpr_count 2")
    out.append("  .amdhsa_user_sgpr_kernarg_segment_ptr 1")
    out.append("  .amdhsa_system_sgpr_workgroup_id_x 1")
    out.append("  .amdhsa_float_denorm_mode_32 3")
    out.append(".end_amdhsa_kernel")
    if "-pfirst" in OPT:
        i0 = out.index("    s_cmp_ge_u32 s23, 4")
        i1 = out.index("L_producer:")
        i2 = out.index("L_end:")
        head, cons, prod, tail = out[:i0], out[i0+2:i1], out[i1:i2], out[i2:]
        out[:] = head + ["    s_cmp_lt_u32 s23, 4", "    s_cbranch_scc1 L_consumer"] + prod + ["    s_endpgm", "L_consumer:"] + cons + tail
    return "\n".join(out) + "\n"

if __name__ == "__main__":
    t = gen()
    args = [a for a in sys.argv[1:] if not a.startswith("-")]
    path = args[0] if args else f"cdna_kernels/{NAME}.s"
    open(path, "w").write(t)
    print("wrote", path, len(t))
```
